```python
import torch

def _softmax(x, axis=-1):
    return torch.softmax(x, dim=axis)

def _gelu(x):
    return torch.nn.functional.gelu(x, approximate='tanh')

def _silu(x):
    return torch.nn.functional.silu(x)

def _sigmoid(x):
    return torch.sigmoid(x)

def _layernorm(x, axis=-1, eps=1e-05):
    m = x.mean(dim=axis, keepdim=True)
    v = x.var(dim=axis, keepdim=True, unbiased=False)
    return (x - m) / torch.sqrt(v + eps)

def _scatter_add(tgt, idx, src, axis=0):
    return tgt.clone().index_add_(axis, idx, src)

def _segment_sum(src, seg, n):
    out = torch.zeros((n,) + src.shape[1:], dtype=src.dtype)
    return out.index_add_(0, seg, src)

def _pad(x, pw):
    flat = tuple((v for pair in reversed(pw) for v in pair))
    return torch.nn.functional.pad(x, flat)
kernel_name = 'adaLN_cond__memory_aug_recurrent_mem_tr__dense_activation_silu__prompt'

def setup_inputs():

    _w = lambda a: (lambda t: t.to(torch.bfloat16) if t.is_floating_point() else t)(torch.as_tensor(a))

    def _A_setup():
        B, S, Dm = (1, 2048, 512)
        H, Dh = (32, 128)
        M, seg = (8, 32)
        seg = min(seg, S)
        S = S // seg * seg
        return {'x': _w((lambda *s: torch.randn(*s, dtype=torch.bfloat16) * 0.05)(B, S, Dm)), 'mem0': _w((lambda *s: torch.randn(*s, dtype=torch.bfloat16) * 0.8)(B, M, Dm)), 'Wq': _w((lambda *s: torch.randn(*s, dtype=torch.bfloat16) * 1.6)(Dm, H, Dh) * Dm ** (-0.5)), 'Wk': _w((lambda *s: torch.randn(*s, dtype=torch.bfloat16) * 1.6)(Dm, H, Dh) * Dm ** (-0.5)), 'Wv': _w((lambda *s: torch.randn(*s, dtype=torch.bfloat16) * 0.8)(Dm, H, Dh) * Dm ** (-0.5)), 'Wo': _w((lambda *s: torch.randn(*s, dtype=torch.bfloat16) * 0.8)(H, Dh, Dm) * (H * Dh) ** (-0.5)), 'seg_len': seg}
    _A_in = _A_setup()

    def _B_setup():
        B, S, D, F = (1, 2048, 512, 1792)
        return {'x': _w((lambda *s: torch.randn(*s, dtype=torch.bfloat16) * 0.05)(B, S, D)), 'w1': _w((lambda *s: torch.randn(*s, dtype=torch.bfloat16) * 3.2)(D, F) * D ** (-0.5)), 'w2': _w((lambda *s: torch.randn(*s, dtype=torch.bfloat16) * 0.2)(F, D) * F ** (-0.5))}
    _B_in = _B_setup()
    return {'A_x': _A_in['x'], 'A_mem0': _A_in['mem0'], 'A_Wq': _A_in['Wq'], 'A_Wk': _A_in['Wk'], 'A_Wv': _A_in['Wv'], 'A_Wo': _A_in['Wo'], 'A_seg_len': _A_in['seg_len'], 'B_x': _B_in['x'], 'B_w1': _B_in['w1'], 'B_w2': _B_in['w2'], 'c': _w((lambda *s: torch.randn(*s, dtype=torch.bfloat16) * 0.1)(1, 512) * 8.0), 'w_mod': _w((lambda *s: torch.randn(*s, dtype=torch.bfloat16) * 0.1)(512, 6 * 512) * 512 ** (-0.5) * 8.0)}

def reference(A_x, A_mem0, A_Wq, A_Wk, A_Wv, A_Wo, A_seg_len, B_x, B_w1, B_w2, c, w_mod):

    def _A_ref(x, mem0, Wq, Wk, Wv, Wo, seg_len):
        B, S, Dm = x.shape
        H, Dh = (Wq.shape[1], Wq.shape[2])
        M = mem0.shape[1]
        scale = Dh ** (-0.5)
        n_seg = S // seg_len
        L = M + seg_len
        idx = torch.arange(L)
        mask = (idx[:, None] < M) | (idx[:, None] >= idx[None, :])
        mem = mem0
        outs = []
        for s in range(n_seg):
            xs = x[:, s * seg_len:(s + 1) * seg_len, :].clone()
            h = torch.concatenate([mem, xs], axis=1)
            q = torch.einsum('btd,dhe->bhte', h, Wq)
            k = torch.einsum('btd,dhe->bhte', h, Wk)
            v = torch.einsum('btd,dhe->bhte', h, Wv)
            scores = torch.einsum('bhqe,bhke->bhqk', q, k) * scale
            scores = torch.where(mask[None, None], scores, -1000000000.0)
            p = _softmax(scores, axis=-1)
            o = torch.einsum('bhqk,bhke->bhqe', p, v)
            o = torch.einsum('bhte,hed->btd', o, Wo)
            mem = o[:, :M, :].clone()
            outs.append(o[:, M:, :])
        return torch.concatenate(outs, axis=1)

    def _B_ref(x, w1, w2):
        h = torch.einsum('bsd,df->bsf', x, w1)
        h = _silu(h)
        out = torch.einsum('bsf,fd->bsd', h, w2)
        return out
    x = A_x
    mod = (_silu(c) @ w_mod).reshape(c.shape[0], 6, 1, -1)
    sa, ca, ga, sb, cb, gb = (mod[:, 0].clone(), mod[:, 1].clone(), mod[:, 2].clone(), mod[:, 3].clone(), mod[:, 4].clone(), mod[:, 5].clone())
    h = _layernorm(x, axis=-1) * (1 + ca) + sa
    x = x + ga * _A_ref(h, A_mem0, A_Wq, A_Wk, A_Wv, A_Wo, A_seg_len)
    h = _layernorm(x, axis=-1) * (1 + cb) + sb
    x = x + gb * _B_ref(h, B_w1, B_w2)
    return x
```

```python
import re

REG = re.compile(r'^(-|abs\(|\|)?\s*([vas])(?:\[(\d+):(\d+)\]|(\d+))\)?\|?$')

def regs_of(tok):
    tok = tok.strip()
    m = re.match(r'^-?(?:abs\(|\|)?([vas])(?:\[(\d+):(\d+)\]|(\d+))(?:\)|\|)?$', tok)
    if not m:
        if tok in ('vcc',): return {('s', 'vcc')}
        if tok in ('exec',): return {('s', 'exec')}
        if tok in ('m0',): return {('s', 'm0')}
        if tok in ('vcc_lo', 'vcc_hi'): return {('s', 'vcc')}
        if tok in ('exec_lo', 'exec_hi'): return {('s', 'exec')}
        return set()
    k = m.group(1)
    if m.group(4) is not None:
        return {(k, int(m.group(4)))}
    return {(k, i) for i in range(int(m.group(2)), int(m.group(3)) + 1)}

TRANS = ('v_exp_f32', 'v_log_f32', 'v_rcp_f32', 'v_rsq_f32', 'v_sqrt_f32', 'v_sin_f32', 'v_cos_f32')

def split_ops(s):
    out, depth, cur = [], 0, ''
    for ch in s:
        if ch in '[(': depth += 1
        if ch in '])': depth -= 1
        if ch == ',' and depth == 0:
            out.append(cur.strip()); cur = ''
        else:
            cur += ch
    if cur.strip(): out.append(cur.strip())
    return out

class Ins:
    def __init__(self, text):
        self.text = text
        t = text.split(';')[0].strip()
        parts = t.split(None, 1)
        self.mn = parts[0]
        rest = parts[1] if len(parts) > 1 else ''
        ops = split_ops(rest)
        if ops:
            ops[-1] = ops[-1].split()[0] if not ops[-1].startswith('hwreg') else ops[-1]
        self.mods = rest
        self.ops = ops
        mn = self.mn
        self.kind = 'other'
        self.w = set(); self.r = set(); self.srcc = set(); self.ab = set(); self.passes = 0
        R = [regs_of(o) for o in ops]
        if mn.startswith('v_mfma') or mn.startswith('v_smfmac'):
            self.kind = 'mfma'
            self.passes = 8 if '32x32' in mn else (2 if '4x4x4' in mn else 4)
            self.w = R[0]
            self.ab = R[1] | R[2]
            if mn.startswith('v_smfmac'):
                self.srcc = R[0]; self.ab |= R[3]
            else:
                self.srcc = R[3]
            self.r = self.ab | self.srcc
        elif mn.startswith('v_'):
            self.kind = 'valu'
            if (mn.startswith('v_permlane') and 'swap' in mn) or mn.startswith('v_swap'):
                self.w = R[0] | R[1]; self.r = R[0] | R[1]
            elif mn.startswith('v_cmp'):
                self.w = R[0]; self.r = set().union(*R[1:])
                if mn.startswith('v_cmpx'): self.w |= {('s', 'exec')}
            elif mn.startswith(('v_add_co', 'v_sub_co', 'v_addc_co', 'v_subb_co')):
                self.w = R[0] | R[1]; self.r = set().union(*R[2:])
            else:
                self.w = R[0]; self.r = set().union(*R[1:]) if len(R) > 1 else set()
                if mn.startswith(('v_fmac', 'v_dot2c', 'v_mac')) or 'dpp' in mn or 'sdwa' in mn: self.r |= R[0]
                if mn.startswith('v_cndmask') and len(ops) == 3: self.r |= {('s', 'vcc')}
        elif mn.startswith('ds_'):
            self.kind = 'ds'
            if mn.startswith(('ds_read', 'ds_bpermute', 'ds_permute', 'ds_swizzle')):
                self.w = R[0]; self.r = set().union(*R[1:])
            else:
                self.r = set().union(*R)
        elif mn.startswith(('buffer_', 'global_')):
            self.kind = 'vmem'
            is_lds = re.search(r'\blds\b', rest) is not None or 'load_lds' in mn
            if mn.startswith('buffer_load') and not is_lds:
                self.w = R[0]; self.r = set().union(*R[1:])
            elif mn.startswith('global_load') and not is_lds:
                self.w = R[0]; self.r = set().union(*R[1:])
            elif 'atomic' in mn and 'sc0' in rest:
                self.w = R[0]; self.r = set().union(*R)
            else:
                self.r = set().union(*R) if R else set()
            if is_lds: self.r |= {('s', 'm0')}
            self.is_lds = is_lds
            self.wide_store = ('store' in mn and ('x4' in mn or 'x3' in mn))
            if self.wide_store:
                self.sdata = R[0] if mn.startswith('buffer') else R[1]
        elif mn.startswith('s_'):
            self.kind = 'salu'
            if mn in ('s_nop', 's_waitcnt', 's_barrier', 's_sleep', 's_setprio', 's_endpgm', 's_branch') or mn.startswith(('s_cbranch', 's_cmp')):
                self.r = set().union(*R) if R else set()
            else:
                self.w = R[0] if R else set(); self.r = set().union(*R[1:]) if len(R) > 1 else set()
                if 'saveexec' in mn: self.w |= {('s', 'exec')}

class Asm:
    def __init__(self):
        self.lines = []
        self.hist = []
        self.t = 0
        self.last_mfma_t = -100; self.last_mfma_p = 0
        self.npad = 0
        self.uid = 0
    def raw(self, s):
        self.lines.append(s)
    def comment(self, s):
        self.lines.append('    ; ' + s)
    def label(self, name, keep=False):
        self.lines.append(name + ':')
    def newlabel(self, base='L'):
        self.uid += 1
        return f'{base}_{self.uid}'
    def need(self, ins):
        req = self.t
        for (t0, p) in reversed(self.hist):
            if self.t - t0 > 24: break
            d = 0
            vw = p.w
            if p.kind == 'valu':
                vgw = {x for x in vw if x[0] in 'va'}
                sgw = {x for x in vw if x[0] == 's'}
                if ins.kind == 'mfma' and vgw & ins.r: d = max(d, 2)
                if ins.kind == 'mfma' and ('s', 'exec') in sgw: d = max(d, 4)
                if ins.kind == 'valu':
                    if ins.mn.startswith('v_permlane') and vgw & ins.r: d = max(d, 2)
                    if 'dpp' in ins.mn and vgw & ins.r: d = max(d, 2)
                    if 'dpp' in ins.mn and ('s', 'exec') in sgw: d = max(d, 5)
                    if ins.mn.startswith(('v_readfirstlane', 'v_readlane')) and vgw & ins.r: d = max(d, 1)
                    if ins.mn.startswith(('v_readfirstlane', 'v_readlane', 'v_writelane', 'v_permlane')) and ('s', 'exec') in sgw: d = max(d, 4)
                    if p.mn.startswith(TRANS) and vgw & ins.r: d = max(d, 1)
                    if sgw & ins.r: d = max(d, 2)
                    if sgw & ins.r and ins.mn.startswith(('v_readlane', 'v_writelane')): d = max(d, 4)
                    if ('sdwa' in p.mn or 'op_sel' in p.mods) and vgw & (ins.r | ins.w): d = max(d, 1)
                if ins.kind == 'vmem' and sgw & ins.r: d = max(d, 5)
                if ins.kind == 'salu' and sgw & ins.r and not ins.mn.startswith('s_cbranch'): d = max(d, 1)
            elif p.kind == 'mfma':
                P = {2: 0, 4: 1, 8: 2, 16: 3}[p.passes]
                if ins.kind == 'mfma':
                    if vw & ins.ab: d = max(d, (5, 8, 12, 20)[P])
                    if vw & ins.srcc:
                        same = (vw == ins.srcc and p.mn == ins.mn)
                        d = max(d, ((2, 0, 0, 0) if same else (4, 6, 10, 18))[P])
                    elif vw & ins.w:
                        d = max(d, (4, 6, 10, 18)[P])
                elif ins.kind in ('valu', 'ds', 'vmem'):
                    if vw & (ins.r | ins.w): d = max(d, (5, 8, 12, 20)[P])
                    if ins.kind == 'valu' and p.srcc & ins.w: d = max(d, (1, 3, 7, 15)[P])
            elif p.kind == 'salu':
                if ('s', 'm0') in vw and ins.kind == 'vmem' and getattr(ins, 'is_lds', False): d = max(d, 1)
            elif p.kind == 'vmem':
                if getattr(p, 'wide_store', False) and ins.kind != 'salu' and (p.sdata & ins.w): d = max(d, 2)
            if d: req = max(req, t0 + 1 + d)
        return req
    def emit(self, text):
        for line in text.split('\n'):
            line = line.strip()
            if not line: continue
            if line.startswith(';'):
                self.lines.append('    ' + line); continue
            if line.endswith(':'):
                self.lines.append(line); continue
            ins = Ins(line)
            if ins.mn == 's_nop':
                n = int(ins.ops[0], 0) + 1
                self.lines.append('    ' + line); self.t += n; continue
            if ins.kind == 'mfma':
                self.t = max(self.t, self.last_mfma_t + self.last_mfma_p - 1)
            req = self.need(ins)
            if req > self.t:
                n = req - self.t
                self.npad += n
                while n > 0:
                    k = min(n, 16)
                    self.lines.append(f'    s_nop {k-1}')
                    n -= k
                self.t = req
            self.lines.append('    ' + line)
            self.hist.append((self.t, ins))
            if len(self.hist) > 64: self.hist = self.hist[-64:]
            if ins.kind == 'mfma':
                self.last_mfma_t = self.t; self.last_mfma_p = ins.passes
            self.t += 1
    __call__ = emit
    def fence(self, n=12):
        self.emit(f's_nop {n-1}')
    def text(self):
        return '\n'.join(self.lines) + '\n'

def vr(base, n=1):
    return f'v{base}' if n == 1 else f'v[{base}:{base+n-1}]'
def ar(base, n=1):
    return f'a{base}' if n == 1 else f'a[{base}:{base+n-1}]'
def sr(base, n=1):
    return f's{base}' if n == 1 else f's[{base}:{base+n-1}]'
```

```python
from common import *

L_MEMX = 0; L_QX = 0x2000; L_SEL = 0x3000; L_KXCH = 0x4000; L_OX = 0x5000; L_KX = 0x6000; L_WL = 0x8000
L16, IDX, QW, TR, KW, OW, FLG, WL, SS, PS = range(10)
HALF = 10; ONES = 12; VX = 16; AQ = 24; K0 = 32; K1 = 36; V1 = 40; V0 = 44; MA = 48; R0 = 80; R1 = 96; R2 = 112
AKt = (K0, K1); AVt = (V0, V1)
def WK(u, kk): return ar((kk * 2 + u) * 8, 8)
def WQ(u, kk):
    if kk < 5: return ar(128 + (kk * 2 + u) * 8, 8)
    return vr(R0 + ((kk - 5) * 2 + u) * 8, 8)
def WV(u, kk):
    if kk < 7: return vr(144 + (kk * 2 + u) * 8, 8)
    return vr(R0 + u * 8, 8)
WO_SLOT = {(0, 2): R1, (0, 3): R0, (1, 2): R0 + 8, (1, 3): MA + 16, (2, 2): MA + 24, (2, 3): R1 + 8, (3, 2): AQ, (3, 3): K1}
def WOreg(P, t):
    if t < 2:
        i = P * 2 + t
        return ('a', 208 + i * 8) if i < 6 else ('v', 128 + (i - 6) * 8)
    return ('v', WO_SLOT[(P, t)])
def WO(P, t):
    k, b = WOreg(P, t)
    return ar(b, 8) if k == 'a' else vr(b, 8)
S_W, S_H = 3, 4
WS, TS, DB = 8, 12, 16
S_STEP, S_PST, S_PST2, S_PLD, S_PAR, S_MST, S_MLD, S_MRS, S_KV, S_KM, S_KMP, S_KXL, S_NEED, S_SPIN, S_T0, S_T1, S_SENT, S_LIM, S_CS, S_FLG, S_KXR, S_M0M = range(20, 42)
S_WM = 86
P_MEM0, P_WQ, P_WK, P_WV, P_WO = 60, 62, 64, 66, 68

def smf(a, acc, A, B):
    a(f'v_smfmac_f32_16x16x64_bf16 {vr(acc,4)}, {vr(A,4)}, {B}, v{IDX}')
def mf32(a, D, A, B, C):
    a(f'v_mfma_f32_16x16x32_bf16 {vr(D,4)}, {vr(A,4)}, {vr(B,4)}, {C if isinstance(C,str) else vr(C,4)}')
def mf16(a, D, A, B, C):
    a(f'v_mfma_f32_16x16x16_bf16 {vr(D,4)}, {vr(A,2)}, {vr(B,2)}, {C if isinstance(C,str) else vr(C,4)}')
def cvt(a, d, x, y): a(f'v_cvt_pk_bf16_f32 v{d}, v{x}, v{y}')

STAMPS = None
def stamp(a, diag, k):
    if not diag: return
    if STAMPS is not None and k not in STAMPS: return
    a(f's_memtime s[{44+2*k}:{45+2*k}]')

def gen_chain(a, diag=False, fail='L_fail', done='L_done', standalone=False, d1=0, d2=0, d3=-1, d4=-1, opt=(), timing=False):
    vm = VmTrack()
    a(f's_load_dwordx2 s[{P_MEM0}:{P_MEM0+1}], s[0:1], {KA["mem0"]}')
    a(f's_load_dwordx4 s[{P_WK}:{P_WK+3}], s[0:1], {KA["Wk"]}')
    a(f's_load_dwordx2 s[{P_WQ}:{P_WQ+1}], s[0:1], {KA["Wq"]}')
    a(f's_load_dwordx2 s[{P_WO}:{P_WO+1}], s[0:1], {KA["Wo"]}')
    ln = 20
    a(f'v_and_b32 v{ln}, 63, v0')
    a(f'v_lshlrev_b32 v{L16}, 4, v{ln}')
    g, c, t1, t2, t3 = 21, 22, 23, 24, 25
    a(f'v_lshrrev_b32 v{g}, 4, v{ln}')
    a(f'v_and_b32 v{c}, 15, v{ln}')
    DA = 30
    DO = 34
    TA = 38
    TO = 40
    TMP = 80
    for aa in range(4):
        a(f'v_and_b32 v{t1}, 1, v{g}')
        a(f'v_or_b32 v{t1}, {aa<<1}, v{t1}')
        a(f'v_lshlrev_b32 v{t1}, 1, v{t1}')
        a(f'v_xor_b32 v{t1}, v{t1}, v{c}')
        a(f'v_lshlrev_b32 v{t1}, 4, v{t1}')
        a(f'v_lshl_add_u32 v{DA+aa}, v{g}, 13, v{t1}')
    for k, sg in enumerate((0, 1, 8, 9)):
        a(f'v_xor_b32 v{t1}, {sg}, v{ln}')
        a(f'v_lshlrev_b32 v{DO+k}, 4, v{t1}')
    rp, cp = 26, 27
    a(f'v_lshrrev_b32 v{rp}, 2, v{c}')
    a(f'v_and_b32 v{cp}, 3, v{c}')
    a(f'v_lshrrev_b32 v{t1}, 1, v{g}')
    a(f'v_lshlrev_b32 v{t1}, 4, v{t1}')
    a(f'v_lshrrev_b32 v{t2}, 1, v{rp}')
    a(f'v_lshl_add_u32 v{t1}, v{t2}, 3, v{t1}')
    a(f'v_and_b32 v{t3}, 1, v{g}')
    a(f'v_lshl_add_u32 v{t1}, v{t3}, 2, v{t1}')
    a(f'v_and_b32 v28, 1, v{rp}')
    a(f'v_add_u32 v{t1}, v{t1}, v28')
    a(f'v_lshl_add_u32 v28, v{t3}, 1, v28')
    a(f'v_lshl_add_u32 v28, v{t2}, 2, v28')
    a(f's_lshl_b32 s{S_T0}, s{S_W}, 1')
    a(f'v_xor_b32 v28, s{S_T0}, v28')
    a(f'v_lshlrev_b32 v28, 5, v28')
    a(f'v_lshl_add_u32 v28, v{t1}, 8, v28')
    a(f'v_lshl_add_u32 v28, v{cp}, 3, v28')
    a(f'v_add_u32 v{TA}, {L_WL}, v28')
    a(f'v_xor_b32 v{TA+1}, 32, v{TA}')
    a(f'v_and_b32 v28, 1, v{rp}')
    a(f'v_lshl_add_u32 v{t1}, v{g}, 2, v28')
    a(f'v_lshl_add_u32 v28, v{t3}, 3, v28')
    a(f'v_lshlrev_b32 v29, 2, v{t2}')
    a(f'v_and_b32 v{t2}, 2, v{cp}')
    a(f'v_add_u32 v29, v29, v{t2}')
    a(f's_lshl_b32 s{S_T0}, s{S_W}, 4')
    a(f'v_add_u32 v29, s{S_T0}, v29')
    a(f'v_xor_b32 v29, v29, v28')
    a(f'v_lshlrev_b32 v29, 4, v29')
    a(f'v_lshl_add_u32 v29, v{t1}, 10, v29')
    a(f'v_and_b32 v{t2}, 1, v{cp}')
    a(f'v_lshl_add_u32 v29, v{t2}, 3, v29')
    a(f'v_add_u32 v{TO}, {L_WL}, v29')
    a(f'v_and_b32 v{t1}, 8, v{ln}')
    a(f'v_cmp_eq_u32 vcc, 0, v{t1}')
    a(f'v_mov_b32 v{t2}, 0xeeeeeeee')
    a(f'v_mov_b32 v{t3}, 0x44444444')
    a(f'v_cndmask_b32 v{IDX}, v{t2}, v{t3}, vcc')
    a(f'v_lshrrev_b32 v{t1}, 5, v{ln}')
    a(f'v_lshl_add_u32 v{t1}, v{t1}, 4, v{c}')
    a(f's_lshl_b32 s{S_T0}, s{S_W}, 10')
    a(f'v_lshlrev_b32 v{t1}, 5, v{t1}')
    a(f'v_xor_b32 v{t2}, v{g}, v{rp}')
    a(f'v_and_b32 v{t3}, 1, v{t2}')
    a(f'v_lshl_add_u32 v{t1}, v{t3}, 3, v{t1}')
    a(f's_add_u32 s{S_T1}, s{S_T0}, {L_QX}')
    a(f'v_add_u32 v{QW}, s{S_T1}, v{t1}')
    a(f'v_lshlrev_b32 v{t1}, 5, v{c}')
    a(f'v_lshl_add_u32 v{t1}, v{t2}, 3, v{t1}')
    a(f's_add_u32 s{S_T1}, s{S_T0}, {L_KXCH}')
    a(f'v_add_u32 v{KW}, s{S_T1}, v{t1}')
    a(f'v_lshl_add_u32 v{t1}, v{g}, 2, v{rp}')
    a(f'v_xor_b32 v{t2}, v{cp}, v{g}')
    a(f'v_lshlrev_b32 v{t2}, 3, v{t2}')
    a(f'v_lshl_add_u32 v{TR}, v{t1}, 5, v{t2}')
    a(f'v_lshrrev_b32 v{t2}, 1, v{g}')
    a(f'v_lshlrev_b32 v{t2}, 8, v{t2}')
    a(f'v_lshl_add_u32 v{t2}, v{c}, 4, v{t2}')
    a(f'v_and_b32 v{t3}, 1, v{g}')
    a(f'v_lshl_add_u32 v{t2}, v{t3}, 3, v{t2}')
    a(f's_add_u32 s{S_T1}, s{S_T0}, {L_OX}')
    a(f'v_add_u32 v{OW}, s{S_T1}, v{t2}')
    a(f'v_mov_b32 v{FLG}, -1')
    a(f'v_and_b32 v{t1}, 7, v{ln}')
    a(f'v_lshlrev_b32 v{t1}, 4, v{t1}')
    a(f's_lshl_b32 s{S_T0}, s{S_W}, 12')
    a(f's_add_u32 s{S_T0}, s{S_T0}, {L_WL}')
    a(f'v_add_u32 v{WL}, s{S_T0}, v{L16}')
    a(f'v_lshl_add_u32 v{t1}, v{t3}, 7, v{t1}')
    a(f'v_lshrrev_b32 v{t2}, 5, v{ln}')
    a(f'v_bfe_u32 v{t3}, v{ln}, 3, 1')
    a(f'v_lshl_add_u32 v{t2}, v{t2}, 1, v{t3}')
    a(f's_lshl_b32 s{S_T0}, s{S_W}, 3')
    a(f'v_add_u32 v{t2}, s{S_T0}, v{t2}')
    a(f'v_lshl_add_u32 v{PS}, v{t2}, 13, v{t1}')
    a(f'v_lshrrev_b32 v{t1}, 1, v{g}')
    a(f'v_lshl_add_u32 v{t1}, v{t1}, 2, v{cp}')
    a(f'v_lshlrev_b32 v{t1}, 4, v{t1}')
    a(f'v_and_b32 v{t2}, 1, v{rp}')
    a(f'v_lshl_add_u32 v{t1}, v{t2}, 7, v{t1}')
    a(f'v_and_b32 v{t2}, 1, v{g}')
    a(f'v_lshl_add_u32 v{SS}, v{t2}, 3, v{t1}')
    for k in range(2): a(f'v_mov_b32 v{HALF+k}, 0x3f003f00')
    for k in range(4): a(f'v_mov_b32 v{ONES+k}, 0x3f803f80')
    a(f'v_and_b32 v{t1}, 7, v{ln}')
    a(f'v_and_b32 v{t2}, 1, v{ln}')
    a(f'v_lshlrev_b32 v{t2}, 4, v{t2}')
    a(f'v_mov_b32 v{t3}, 0x3f80')
    a(f'v_lshlrev_b32 v{t3}, v{t2}, v{t3}')
    a(f'v_lshrrev_b32 v{t1}, 1, v{t1}')
    for r in range(4):
        a(f'v_cmp_eq_u32 vcc, {r}, v{t1}')
        a(f'v_cndmask_b32 v{44+r}, 0, v{t3}, vcc')
    a(f'ds_write_b128 v{L16}, v[44:47] offset:{L_SEL}')
    M0V = 42
    a(f'v_and_b32 v{t1}, 7, v{ln}')
    a(f'v_lshlrev_b32 v{t1}, 10, v{t1}')
    a(f'v_lshl_add_u32 v{t1}, v{g}, 5, v{t1}')
    a(f'v_bfe_u32 v{t2}, v{ln}, 3, 1')
    a(f'v_lshl_add_u32 v{M0V}, v{t2}, 4, v{t1}')
    a(f's_mov_b32 s{S_SENT}, {SENT:#x}')
    a(f's_mov_b32 s{S_LIM}, {f32bits(2.0**60):#x}')
    a(f's_mov_b32 s{S_CS}, {f32bits(SCALE_LOG2E):#x}')
    a('s_waitcnt lgkmcnt(0)')

    items = [('k', kk) for kk in range(8)] + [('q', kk) for kk in range(5)] + [('v', kk) for kk in range(7)] + \
            [('o', 0), ('o', 1), ('q', 5), ('q', 6), ('q', 7), ('v', 7), ('o', 2), ('o', 3)]
    units = []; u0 = 0
    for it in items:
        n = 2 if it[0] == 'o' else 1
        units.append((u0, n)); u0 += n
    ptr = {'q': P_WQ, 'k': P_WK, 'v': P_WV, 'o': P_WO}
    cur_srd = [None]
    S_A, S_B = 42, 43
    def issue(ii):
        m, kk = items[ii]; u, n = units[ii]
        if cur_srd[0] != m:
            srd(a, TS, ptr[m], ptr[m] + 1, 4 << 20); cur_srd[0] = m
        lds = L_WL + (u % 8) * 16384
        if m != 'o':
            a(f's_lshl_b32 s{S_A}, s{S_W}, 17')
            a(f's_lshl_b32 s{S_B}, s{S_H}, 8')
            a(f's_add_u32 s{S_A}, s{S_A}, s{S_B}')
            a(f's_add_u32 s{S_A}, s{S_A}, {kk*64*8192:#x}')
            a(f's_lshl_b32 s{S_B}, s{S_W}, 12')
            a(f's_add_u32 s{S_B}, s{S_B}, {lds}')
            for aa in range(4):
                a(f's_mov_b32 m0, s{S_B}')
                if aa < 3: a(f's_add_u32 s{S_B}, s{S_B}, 1024')
                a(f'buffer_load_dwordx4 v{DA+aa}, s[{TS}:{TS+3}], s{S_A} offen lds'); vm.add(ii)
                if aa < 3: a(f's_add_u32 s{S_A}, s{S_A}, {4*8192}')
        else:
            a(f's_lshl_b32 s{S_A}, s{S_H}, 17')
            a(f's_lshl_b32 s{S_B}, s{S_W}, 13')
            a(f's_add_u32 s{S_A}, s{S_A}, s{S_B}')
            a(f's_add_u32 s{S_A}, s{S_A}, {kk*32*1024}')
            a(f's_add_u32 s{S_B}, s{S_B}, {lds}')
            for aa in range(8):
                a(f's_mov_b32 m0, s{S_B}')
                if aa < 7: a(f's_add_u32 s{S_B}, s{S_B}, 1024')
                var = (aa & 1) | ((aa >> 2) & 1) << 1
                a(f'buffer_load_dwordx4 v{DO+var}, s[{TS}:{TS+3}], s{S_A} offen lds'); vm.add(ii)
                if aa < 7: a(f's_add_u32 s{S_A}, s{S_A}, 1024')
    def in_lds(ii):
        m, kk = items[ii]
        return (m == 'q' and kk >= 5) or (m == 'v' and kk == 7) or (m == 'o' and kk >= 2)
    def trread(ii):
        m, kk = items[ii]; u, n = units[ii]
        off = (u % 8) * 16384
        hi = off >= 0x8000
        if m != 'o':
            for uu in range(2):
                if in_lds(ii): kind, base = 'v', TMP + uu * 8
                else:
                    nm = {'q': WQ, 'k': WK, 'v': WV}[m](uu, kk)
                    kind, base = nm[0], int(nm[2:].split(':')[0])
                if hi: a(f'v_add_u32 v41, {off}, v{TA+uu}')
                for hf in range(2):
                    for x in range(2):
                        o = hf * 8192 + x * 512 + (0 if hi else off)
                        b = base + hf * 4 + x * 2
                        a(f'ds_read_b64_tr_b16 {kind}[{b}:{b+1}], v{41 if hi else TA+uu} offset:{o}')
        else:
            for P in range(4):
                if in_lds(ii): kind, base = 'v', TMP + P * 8
                else: kind, base = WOreg(P, kk)
                a(f'v_xor_b32 v41, {(P&1)*16 + (P>>1)*128}, v{TO}')
                a(f'v_add_u32 v41, {off}, v41')
                for hf in range(2):
                    for x in range(2):
                        b = base + hf * 4 + x * 2
                        a(f'ds_read_b64_tr_b16 {kind}[{b}:{b+1}], v41 offset:{hf*16384 + x*2048}')
    def writeback(ii):
        m, kk = items[ii]; u, n = units[ii]
        off = (u % 8) * 16384
        a(f'v_add_u32 v41, {off}, v{WL}')
        for f in range(2 * n):
            for hf in range(2):
                a(f'ds_write_b128 v41, {vr(TMP + f*8 + hf*4, 4)} offset:{(f>>1)*16384 + (f&1)*2048 + hf*1024}')
    nxt = 0
    free_upto = 8
    def try_issue():
        nonlocal nxt
        while nxt < len(items) and units[nxt][0] + units[nxt][1] <= free_upto:
            issue(nxt); nxt += 1
    try_issue()
    late_done = False
    for ii in range(len(items)):
        a(f's_waitcnt vmcnt({min(63, vm.after(ii))}) lgkmcnt(0)')
        a('s_barrier')
        if ii > 0:
            if in_lds(ii - 1): writeback(ii - 1)
            else:
                free_upto = units[ii - 1][0] + units[ii - 1][1] + 8
                try_issue()
        if nxt == len(items) and not late_done:
            late_done = True
            a(f'v_mov_b32 v44, 1')
            for k in range(1, 4): a(f'v_mov_b32 v{44+k}, 0')
            a(f's_lshl_b32 s{S_A}, s{S_H}, 13')
            a(f's_lshl_b32 s{S_B}, s{S_W}, 11')
            a(f's_add_u32 s{S_A}, s{S_A}, s{S_B}')
            a(f's_add_u32 s{S_A}, s{S_A}, {WS_PART:#x}')
            for sl in range(2):
                for k in range(2):
                    a(f'buffer_store_dwordx4 v[44:47], v{L16}, s[{WS}:{WS+3}], s{S_A} offen offset:{k*1024}'); vm.add('init')
                if sl == 0: a(f's_add_u32 s{S_A}, s{S_A}, 0x40000')
            a(f'v_mov_b32 v48, s{S_SENT}')
            a(f'v_mov_b32 v49, s{S_SENT}')
            a(f's_lshl_b32 s{S_A}, s{S_H}, 8')
            a(f's_lshl_b32 s{S_B}, s{S_W}, 13')
            a(f's_add_u32 s{S_A}, s{S_A}, s{S_B}')
            a(f's_add_u32 s{S_A}, s{S_A}, {WS_MEMR:#x}')
            a(f'buffer_store_dwordx2 v[48:49], v{SS}, s[{WS}:{WS+3}], s{S_A} offen'); vm.add('init')
        trread(ii)
    a('s_waitcnt vmcnt(0) lgkmcnt(0)')
    a('s_barrier')
    writeback(len(items) - 1)
    a(f'v_mov_b32 v44, 1')
    a(f's_cmp_eq_u32 s{S_W}, 0')
    Lx = a.newlabel('L_ch')
    a(f's_cbranch_scc0 {Lx}')
    a(f's_mov_b64 exec, 1')
    a(f'buffer_atomic_add v44, off, s[{DB}:{DB+3}], 0 offset:4 sc1')
    a(f's_mov_b64 exec, -1')
    a.label(Lx)
    srd(a, TS, P_MEM0, P_MEM0 + 1, 8192)
    for kk in range(8):
        a(f'buffer_load_dwordx4 {vr(MA+4*kk,4)}, v{M0V}, s[{TS}:{TS+3}], 0 offen offset:{kk*128}')
    a(f's_lshl_b32 s{S_FLG}, s{S_H}, 7')
    a(f's_add_u32 s{S_FLG}, s{S_FLG}, {WS_FLAG:#x}')
    a(f's_mov_b32 s{S_SPIN}, 0')
    Lw = a.newlabel('L_chw')
    a.label(Lw)
    a(f'buffer_load_dword v44, off, s[{DB}:{DB+3}], 0 offset:4 sc1')
    if not standalone:
        a(f'buffer_load_dword v45, off, s[{DB}:{DB+3}], 0 offset:{DBG_LN1} sc1')
    a(f's_add_u32 s{S_SPIN}, s{S_SPIN}, 1')
    a(f's_cmp_gt_u32 s{S_SPIN}, {SPIN_MAX}')
    a(f's_cbranch_scc1 {fail}')
    a('s_waitcnt vmcnt(0)')
    a(f'v_cmp_gt_u32 vcc, 32, v44')
    a(f's_cbranch_vccnz {Lw}')
    if not standalone:
        a(f'v_cmp_gt_u32 vcc, {N_LN1}, v45')
        a(f's_cbranch_vccnz {Lw}')
    def flag_load():
        a('s_mov_b64 exec, 3')
        a(f'buffer_load_dword v{FLG}, v{L16}, s[{WS}:{WS+3}], s{S_FLG} offen sc1')
        a('s_mov_b64 exec, -1')
    def flag_wait(need_sgpr):
        L = a.newlabel('L_fw')
        a(f's_mov_b32 s{S_SPIN}, 0')
        a.label(L)
        flag_load()
        a(f's_add_u32 s{S_SPIN}, s{S_SPIN}, 1')
        a(f's_cmp_gt_u32 s{S_SPIN}, {SPIN_MAX}')
        a(f's_cbranch_scc1 {fail}')
        a('s_waitcnt vmcnt(0)')
        a(f'v_cmp_gt_u32 vcc, s{need_sgpr}, v{FLG}')
        a(f's_cbranch_vccnz {L}')
    a(f's_mov_b32 s{S_NEED}, 2')
    flag_wait(S_NEED)
    a(f's_lshl_b32 s{S_KV}, s{S_H}, 21')
    a(f's_lshl_b32 s{S_T0}, s{S_W}, 11')
    a(f's_add_u32 s{S_KV}, s{S_KV}, s{S_T0}')
    a(f's_add_u32 s{S_KV}, s{S_KV}, {WS_QKV + 8192:#x}')
    a(f's_add_u32 s{S_KXL}, s{S_T0}, {L_KX}')
    a(f's_add_u32 s{S_M0M}, s{S_T0}, {L_MEMX}')
    def kx_dma():
        a(f's_mov_b32 m0, s{S_KXL}')
        a(f'buffer_load_dwordx4 v{L16}, s[{WS}:{WS+3}], s{S_KV} offen sc1 lds')
        a(f'buffer_load_dwordx4 v{L16}, s[{WS}:{WS+3}], s{S_KV} offen offset:1024 sc1 lds')
    def vx_load():
        a(f's_add_u32 s{S_T0}, s{S_KV}, 8192')
        for u in range(2):
            a(f'buffer_load_dwordx4 {vr(VX+4*u,4)}, v{L16}, s[{WS}:{WS+3}], s{S_T0} offen offset:{u*1024} sc1')
    kx_dma(); vx_load()
    a(f's_mov_b32 s{S_STEP}, 0')
    a(f's_lshl_b32 s{S_KM}, s{S_H}, 8')
    a(f's_add_u32 s{S_KM}, s{S_KM}, {WS_MEMG:#x}')
    a(f's_cmp_eq_u32 s{S_W}, 0')
    a(f's_cselect_b64 s[{S_WM}:{S_WM+1}], -1, 0')
    a('s_mov_b32 s96, 0')
    def prefetch_wq():
        for kk in (5, 6, 7):
            for u in range(2):
                for hf in range(2):
                    b = R0 + ((kk - 5) * 2 + u) * 8 + hf * 4
                    a(f'ds_read_b128 {vr(b,4)}, v{WL} offset:{(kk-5)*16384 + u*2048 + hf*1024}')
    def zero(b, n):
        for k in range(b, b + n, 2): a(f'v_mov_b64 v[{k}:{k+1}], 0')
    a('s_waitcnt lgkmcnt(0)')
    a('s_barrier')
    prefetch_wq(); zero(AQ, 24)
    a('s_waitcnt vmcnt(0)')
    for kk in range(8): a(f'ds_write_b128 v{L16}, {vr(MA+4*kk,4)} offset:{L_MEMX + kk*1024}')
    a('s_waitcnt vmcnt(0) lgkmcnt(0)')
    a('s_barrier')
    Lmid = a.newlabel('L_chmid'); Lhead = a.newlabel('L_chhead'); Llast = a.newlabel('L_chlast')
    if standalone or timing: a('s_memtime s[76:77]')
    if standalone or timing: a('s_waitcnt lgkmcnt(0)')
    a(f's_branch {Lmid}')

    KORD = (5, 6, 7, 0, 1, 2, 3, 4)
    lg = VmTrack()
    def DS(text, tag): a(text); lg.add(tag)
    def LW(tag): a(f's_waitcnt lgkmcnt({min(15, lg.after(tag))})')
    Lslowflag = a.newlabel('L_chsf'); Lflagok = a.newlabel('L_chfo')
    Lfb = a.newlabel('L_chfb'); Lfbret = a.newlabel('L_chfr')
    Lnan = a.newlabel('L_chnan'); Lnanret = a.newlabel('L_chnr'); Lkstart = a.newlabel('L_chks')
    X0, X1, Y, O0, O1, LL, PX = AQ, AQ + 4, K1, R2, R2 + 4, R2 + 8, R2 + 12
    PM, MX, T1 = R1 + 12, R1 + 14, R1 + 15
    QF, KMF, OF, WA = R0, R1, R2, MA
    def delay(n):
        while n > 0:
            k = min(n, 16); a(f's_nop {k-1}'); n -= k
    def mem_dma():
        a(f'buffer_load_dwordx4 v{L16}, s[{WS}:{WS+3}], s{S_MLD} offen sc1 lds')
        a(f'buffer_load_dwordx4 v{L16}, s[{WS}:{WS+3}], s{S_MLD} offen offset:1024 sc1 lds')
    def publish():
        if 'nopub' in opt: return
        a(f'buffer_store_dwordx4 {vr(K0,4)}, v{L16}, s[{WS}:{WS+3}], s{S_KM} offen sc1')
        a(f'buffer_store_dwordx4 {vr(V0,4)}, v{L16}, s[{WS}:{WS+3}], s{S_KXR} offen sc1')
    sw = lambda x, y: f'v_permlane32_swap_b32 v{x}, v{y}'
    ad = lambda x, y: f'v_add_f32 v{x}, v{x}, v{y}'
    cv = lambda d, x, y: f'v_cvt_pk_bf16_f32 v{d}, v{x}, v{y}'
    ex = lambda d, s_: f'v_exp_f32 v{d}, v{s_}'
    def fill(lst):
        for x in lst:
            if isinstance(x, tuple):
                if x[0] == 'ds': DS(x[1], x[2])
                elif x[0] == 'lw': LW(x[1])
                elif x[0] == 'lab': a.label(x[1])
                elif x[0] == 'S': S(x[1])
            else: a(x)
    def S(n=1):
        for _ in range(n):
            if sal: a(sal.pop(0))
    Lq = a.newlabel('L_chq'); Lqok = a.newlabel('L_chqok'); Lqx = a.newlabel('L_chqx')
    CK = K0
    a.raw('.p2align 6')
    a.label(Lhead)
    a(f's_mov_b32 m0, s{S_M0M}')
    a(f's_add_u32 s{S_NEED}, s{S_NEED}, 1')
    a(f's_min_u32 s{S_NEED}, s{S_NEED}, 64')
    a(f's_add_u32 s{S_STEP}, s{S_STEP}, 1')
    a(f's_cmp_eq_u32 s{S_STEP}, 63')
    a(f's_cbranch_scc1 {Llast}')
    if diag:
        Lnd = a.newlabel('L_nd')
        a(f's_cmp_eq_u32 s{S_STEP}, 32')
        a(f's_cbranch_scc0 {Lnd}')
        a('s_waitcnt vmcnt(0) lgkmcnt(0)')
        for k in range(16): a(f'v_mov_b32 v{MA+k}, s{44+2*k}')
        a(f'v_mov_b32 v{MA+16}, s96')
        a(f's_lshl_b32 s{S_T0}, s{S_H}, 9'); a(f's_lshl_b32 s{S_T1}, s{S_W}, 7'); a(f's_add_u32 s{S_T0}, s{S_T0}, s{S_T1}'); a(f's_add_u32 s{S_T0}, s{S_T0}, {WS_STAMP:#x}')
        a('s_mov_b64 exec, 1')
        for k in range(5): a(f'buffer_store_dwordx4 {vr(MA+4*k,4)}, off, s[{WS}:{WS+3}], s{S_T0} offset:{16*k}')
        a('s_mov_b64 exec, -1')
        a('s_waitcnt vmcnt(0)')
        a.label(Lnd)
    a(f'v_add_u32 v{CK+2}, s{S_M0M}, v{L16}')
    zero(K1, 8)
    a(f's_mov_b32 s{S_SPIN}, 0')
    delay(d2)
    stamp(a, diag, 0)
    nc = 'nocomm' in opt
    if not nc: mem_dma()
    a(f's_waitcnt vmcnt({(3 + ("dump" in opt)) if not nc else 1})')
    a(f'v_cmp_gt_u32 vcc, s{S_NEED}, v{FLG}')
    zero(AQ, 8)
    if not nc: delay(max(d3, 0)); mem_dma()
    prefetch_wq()
    a(f's_cbranch_vccnz {Lslowflag}'); a.label(Lflagok)
    if not nc:
        a.label(Lq)
        a('s_waitcnt vmcnt(2)')
        a(f'ds_read2st64_b32 {vr(CK,2)}, v{CK+2} offset0:0 offset1:4')
        a('s_waitcnt lgkmcnt(0)')
        a(f'v_cmp_u_f32 vcc, v{CK}, v{CK+1}')
        a(f's_cbranch_vccnz {Lqx}')
        a.label(Lqok)
    else:
        a('s_waitcnt lgkmcnt(0)')
    stamp(a, diag, 1)
    a('s_barrier')
    stamp(a, diag, 2)
    def mar(j): return ('ds', f'ds_read_b128 {vr(MA+4*KORD[j],4)}, v{L16} offset:{L_MEMX + KORD[j]*1024}', ('ma', j))
    fill([mar(0), mar(1), mar(2), mar(3)])
    sal = [f's_add_u32 s{S_KV}, s{S_KV}, {0 if "samekv" in opt else 0x8000}', f's_add_u32 s{S_B}, s{S_KV}, s{S_M0M}',
            f's_add_u32 s{S_KM}, s{S_KM}, 8192',
            f's_add_u32 s{S_T0}, s{S_STEP}, 1', f's_and_b32 s{S_T0}, s{S_T0}, 3', f's_lshl_b32 s{S_T0}, s{S_T0}, 13', f's_add_u32 s{S_T0}, s{S_T0}, {WS_MEMR:#x}',
            f's_lshl_b32 s{S_T1}, s{S_H}, 8',
            f's_add_u32 s{S_MST}, s{S_T0}, s{S_T1}', f's_xor_b32 s{S_MRS}, s{S_MST}, 0x4000',
            f's_add_u32 s{S_MLD}, s{S_T0}, s{S_M0M}',
            f's_and_b32 s{S_T0}, s{S_STEP}, 1', f's_lshl_b32 s{S_T0}, s{S_T0}, 18', f's_add_u32 s{S_T0}, s{S_T0}, {WS_PART:#x}',
            f's_add_u32 s{S_PST}, s{S_T0}, s{S_T1}', f's_add_u32 s{S_PST2}, s{S_PST}, 0x8000',
            f's_lshl_b32 s{S_PLD}, s{S_H}, 13', f's_add_u32 s{S_PLD}, s{S_PLD}, s{S_T0}',
            f's_bfe_u32 s{S_PAR}, s{S_STEP}, 0x10001']
    def kxr(x): return ('ds', f'ds_read_b128 {vr(R1+4*x,4)}, v{L16} offset:{L_KX + x*1024}', ('kx', x))
    pub = 'nopub' not in opt
    if pub:
        a(f's_mov_b64 exec, s[{S_WM}:{S_WM+1}]')
        a(f'buffer_store_dwordx2 {vr(V0,2)}, v{SS}, s[{WS}:{WS+3}], s{S_KM} offen sc1')
        a('s_mov_b64 exec, -1')
    qg = {g: [] for g in range(16)}
    qg[0] = [mar(4)]; qg[1] = [mar(5)]; qg[2] = [mar(6)]; qg[3] = [mar(7)]
    qg[4] = [('S', 2), f'v_lshlrev_b32 v{R0}, 2, v{L16}']
    qg[5] = [f's_mov_b32 m0, {L_SEL + 1024}', ('S', 1)] + ([f'buffer_load_dword v{R0}, s[{WS}:{WS+3}], s{S_B} offen sc1 lds'] if 'notouch' not in opt else [])
    for x in range(8): qg[6 + x] = [('S', 1), kxr(x)]
    qg[14] = [('S', 2), f'v_mov_b64 {vr(K0,2)}, 0']
    qg[15] = [('S', 2), f'v_mov_b64 {vr(K0+2,2)}, 0']
    a.label(Lmid)
    for j, kk in enumerate(KORD):
        for u in range(2):
            gi = 2 * j + u
            if u == 0: LW(('ma', j))
            smf(a, AQ + 4 * u, MA + 4 * kk, WQ(u, kk))
            fill(qg[gi])
    stamp(a, diag, 3)
    kg = {g: [] for g in range(16)}
    def qf(t, x): return ('ds', f'ds_read_b64_tr_b16 {vr(QF+4*t+2*x,2)}, v{TR} offset:{L_QX + (32*t+16*x)*32}', ('qf', t))
    kg[0] = [('S', 2), f'v_mov_b64 {vr(V0,2)}, 0']
    kg[1] = [('S', 2), f'v_mov_b64 {vr(V0+2,2)}, 0']
    kg[2] = [sw(AQ, AQ + 4), sw(AQ + 1, AQ + 5)]
    kg[3] = [ad(AQ, AQ + 4), ad(AQ + 1, AQ + 5), sw(AQ + 2, AQ + 6)]
    kg[4] = [sw(AQ + 3, AQ + 7), cv(AQ, AQ, AQ + 1), ad(AQ + 2, AQ + 6)]
    kg[5] = [ad(AQ + 3, AQ + 7), cv(AQ + 1, AQ + 2, AQ + 3), ('ds', f'ds_write2_b64 v{QW}, {vr(AQ,2)}, {vr(AQ,2)} offset0:0 offset1:2', 'qw')]
    if 'noflag' not in opt: kg[7] = ['s_mov_b64 exec, 3', f'buffer_load_dword v{FLG}, v{L16}, s[{WS}:{WS+3}], s{S_FLG} offen sc1', 's_mov_b64 exec, -1']
    kg[9] = [('lw', 'qw'), 's_barrier', qf(0, 0)]
    kg[10] = [qf(0, 1), cv(K0, K0, K0 + 1)]
    kg[11] = [qf(1, 0), cv(K0 + 1, K0 + 2, K0 + 3)]
    kg[12] = [qf(1, 1), ('ds', f'ds_write_b64 v{KW}, {vr(K0,2)}', 'kw0')]
    kg[13] = [qf(2, 0), qf(2, 1)]
    kg[14] = [qf(3, 0)]
    kg[15] = [qf(3, 1)]
    for gi in range(16):
        u, kk = gi >> 3, gi & 7
        smf(a, AKt[u], MA + 4 * kk, WK(u, kk))
        fill(kg[gi])
    stamp(a, diag, 4)
    for t in range(4):
        if t in (0, 2): LW(('qf', t + 1))
        mf32(a, X0, R1 + 4 * t, QF + 4 * t, '0' if t == 0 else X0)
        if t == 1:
            cvt(a, K0 + 2, K1, K1 + 1); cvt(a, K0 + 3, K1 + 2, K1 + 3)
            DS(f'ds_write_b64 v{KW}, {vr(K0+2,2)} offset:512', 'kw1')
    for t in range(4):
        mf32(a, X1, R2 + 4 * t, QF + 4 * t, '0' if t == 0 else X1)
        if t == 2: a(ex(O0, X0))
    assert not sal, sal
    LW('kw1'); a('s_barrier')
    stamp(a, diag, 5)
    def V(i): smf(a, AVt[i >> 3], MA + 4 * (i & 7), WV(i >> 3, i & 7))
    vorder = [0, 1, 2, 3, 4, 5, 6, 8, 9, 10, 11, 12, 13, 14, 7, 15]
    def kmf(t, x): DS(f'ds_read_b64_tr_b16 {vr(KMF+4*t+2*x,2)}, v{TR} offset:{L_KXCH + (32*t+16*x)*32}', ('km', t))
    def wvf(u, hf): DS(f'ds_read_b128 {vr(R0+8*u+4*hf,4)}, v{WL} offset:{3*16384 + u*2048 + hf*1024}', ('wv', u))
    def wof(P, t, hf): DS(f'ds_read_b128 {vr(WO_SLOT[(P,t)]+4*hf,4)}, v{WL} offset:{(2*(t-2) + (P>>1))*16384 + (P&1)*2048 + hf*1024}', ('wo', P, t))
    nov = 'novx' in opt
    kmf(0, 0); kmf(0, 1); kmf(1, 0); kmf(1, 1)
    V(vorder[0]); kmf(2, 0); kmf(2, 1); a(ex(O0 + 1, X0 + 1))
    V(vorder[1]); kmf(3, 0); kmf(3, 1); a(ex(O0 + 2, X0 + 2))
    V(vorder[2]); a(f's_mov_b32 m0, s{S_KXL}'); a(ex(O0 + 3, X0 + 3))
    for t in range(4):
        LW(('km', t))
        mf32(a, Y, KMF + 4 * t, QF + 4 * t, '0' if t == 0 else Y)
        a(ex(O1 + t, X1 + t))
    V(vorder[3]); wvf(0, 0); a(cv(PX, O0, O0 + 1)); a(cv(PX + 1, O0 + 2, O0 + 3))
    V(vorder[4]); wvf(0, 1); a(cv(PX + 2, O1, O1 + 1))
    V(vorder[5]); wvf(1, 0); a(sw(Y, Y + 2))
    V(vorder[6]); wvf(1, 1); a(sw(Y + 1, Y + 3))
    V(vorder[7])
    if not nov: a(f'buffer_load_dwordx4 v{L16}, s[{WS}:{WS+3}], s{S_KV} offen sc1 lds')
    a(cv(PX + 3, O1 + 2, O1 + 3)); a(ad(Y, Y + 2))
    V(vorder[8])
    if not nov: a(f'buffer_load_dwordx4 v{L16}, s[{WS}:{WS+3}], s{S_KV} offen offset:1024 sc1 lds')
    a(ad(Y + 1, Y + 3))
    mf32(a, LL, ONES, PX, '0'); a(f'v_mul_f32 v{Y}, s{S_CS}, v{Y}'); a(f'v_mul_f32 v{Y+1}, s{S_CS}, v{Y+1}')
    mf32(a, O0, VX, PX, '0'); a(ex(Y + 2, Y))
    mf32(a, O1, VX + 4, PX, '0'); a(ex(Y + 3, Y + 1))
    V(vorder[9]); a(f's_add_u32 s{S_T0}, s{S_KV}, 8192'); a(f'v_xor_b32 v{WL}, 0x10000, v{WL}')
    V(vorder[10]); wof(0, 2, 0); a(cv(PM, Y + 2, Y + 3))
    V(vorder[11]); wof(0, 2, 1)
    if not nov: a(f'buffer_load_dwordx4 {vr(VX,4)}, v{L16}, s[{WS}:{WS+3}], s{S_T0} offen sc1')
    a(f'v_mov_b32 v{PM+1}, v{PM}')
    V(vorder[12])
    if not nov: a(f'buffer_load_dwordx4 {vr(VX+4,4)}, v{L16}, s[{WS}:{WS+3}], s{S_T0} offen offset:1024 sc1')
    LW(('wv', 1))
    V(vorder[14]); a(sw(PM, PM + 1))
    V(vorder[13]); wof(0, 3, 0)
    V(vorder[15]); wof(0, 3, 1)
    stamp(a, diag, 6)
    cvt(a, V0, V0, V0 + 1); cvt(a, V0 + 1, V0 + 2, V0 + 3)
    mf16(a, LL, HALF, PM, LL)
    wof(1, 2, 0)
    mf16(a, O0, V0, PM, O0)
    cvt(a, V0 + 2, V1, V1 + 1); cvt(a, V0 + 3, V1 + 2, V1 + 3)
    wof(1, 2, 1)
    mf16(a, O1, V0 + 2, PM, O1)
    wof(1, 3, 0)
    a(f'v_med3_f32 v{T1}, v{LL}, s{S_LIM}, v{LL+1}' if False else f'v_rcp_f32 v{MX}, v{LL}')
    a(f'v_max_f32 v{T1}, v{LL}, v{MX}')
    a(f'v_cmp_nge_f32 vcc, s{S_LIM}, v{T1}')
    for r in range(4): a(f'v_mul_f32 v{O0+r}, v{O0+r}, v{MX}')
    cvt(a, O0, O0, O0 + 1); cvt(a, O0 + 1, O0 + 2, O0 + 3)
    a(f's_cbranch_vccnz {Lfb}')
    DS(f'ds_write_b64 v{OW}, {vr(O0,2)}', 'ow0')
    for r in range(4): a(f'v_mul_f32 v{O1+r}, v{O1+r}, v{MX}')
    cvt(a, O1, O1, O1 + 1); cvt(a, O1 + 1, O1 + 2, O1 + 3)
    a.label(Lfbret)
    DS(f'ds_write_b64 v{OW}, {vr(O1,2)} offset:512', 'ow1')
    zero(WA, 16)
    LW('ow1'); a('s_barrier')
    stamp(a, diag, 7)
    for t in range(4): DS(f'ds_read_b128 {vr(OF+4*t,4)}, v{L16} offset:{L_OX + t*1024}', ('of', t))
    rest = [(1, 3, 1), (2, 2, 0), (2, 2, 1), (2, 3, 0), (2, 3, 1), (3, 2, 0), (3, 2, 1), (3, 3, 0), (3, 3, 1)]
    for P in range(4):
        for t in range(4):
            if P == 0: LW(('of', t))
            elif t >= 2 and (P, t) != (1, 2): LW(('wo', P, t))
            smf(a, WA + 4 * P, OF + 4 * t, WO(P, t))
            if rest: wof(*rest.pop(0))
            if P >= 1 and t == 2: cvt(a, WA + 8 * ((P-1) >> 1) + 2 * ((P-1) & 1), WA + 4 * (P-1), WA + 4 * (P-1) + 1)
            if P >= 1 and t == 3: cvt(a, WA + 8 * ((P-1) >> 1) + 2 * ((P-1) & 1) + 1, WA + 4 * (P-1) + 2, WA + 4 * (P-1) + 3)
            if P == 2 and t == 0: a(f'v_bfi_b32 v{WA}, 1, s{S_PAR}, v{WA}')
            if P == 2 and t == 1: a(f'v_xor_b32 v{WL}, 0x10000, v{WL}')
            if P == 3 and t == 0 and 'nops' not in opt: a(f'buffer_store_dwordx4 {vr(WA,4)}, v{PS}, s[{WS}:{WS+3}], s{S_PST} offen')
    a(f'v_bfi_b32 v{WA+8}, 1, s{S_PAR}, v{WA+8}')
    DS(f'ds_read_b128 {vr(AQ+4,4)}, v{L16} offset:{L_SEL}', 'sel')
    a(f's_add_u32 s{S_T1}, s{S_PLD}, 4096')
    a(f's_cmp_eq_u32 s{S_W}, {77 if "nocomm" in opt else 0}')
    cvt(a, WA + 10, WA + 12, WA + 13); cvt(a, WA + 11, WA + 14, WA + 15)
    if 'nops' not in opt: a(f'buffer_store_dwordx4 {vr(WA+8,4)}, v{PS}, s[{WS}:{WS+3}], s{S_PST2} offen')
    stamp(a, diag, 8)
    Lred_done = a.newlabel('L_chrd'); Lp = a.newlabel('L_chp'); Lok = a.newlabel('L_chok'); Lok2 = a.newlabel('L_chok2'); Lw0 = a.newlabel('L_chw0')
    a(f's_cbranch_scc1 {Lw0}')
    a('s_barrier')
    a(f's_branch {Lhead}')
    a.label(Lw0)
    RD, TG = AQ, K1
    SETS = (R0, MA)
    npub = 0
    a(f'v_mov_b32 v{TG}, s{S_SENT}'); a(f'v_mov_b32 v{TG+1}, s{S_SENT}')
    a(f'buffer_store_dwordx2 {vr(TG,2)}, v{SS}, s[{WS}:{WS+3}], s{S_MRS} offen')
    a(f's_mov_b32 s{S_SPIN}, 0')
    delay(d1)
    stamp(a, diag, 9)
    def sweep(b):
        for i in range(8):
            a(f'buffer_load_dwordx4 {vr(b+4*i,4)}, v{L16}, s[{WS}:{WS+3}], s{S_PLD if i < 4 else S_T1} offen offset:{(i&3)*1024} sc1')
    def check(b, base, ok):
        if diag: a('s_add_u32 s96, s96, 1')
        for i in range(8):
            a(f's_waitcnt vmcnt({base-i})' + (' lgkmcnt(0)' if i == 0 else ''))
            mf32(a, RD, b + 4 * i, AQ + 4, '0' if i == 0 else RD)
            if i & 1: a(f'v_bitop3_b32 v{TG+(i>>1)}, v{b+4*i-4}, v{b+4*i}, s{S_PAR} bitop3:0x7e')
            if i == 5: a(f'v_or3_b32 v{TG}, v{TG}, v{TG+1}, v{TG+2}')
        a(f'v_or_b32 v{TG}, v{TG}, v{TG+3}')
        a(f'v_and_b32 v{TG}, 1, v{TG}')
        a(f'v_cmp_ne_u32 vcc, 0, v{TG}')
        cvt(a, V0, RD, RD + 1); cvt(a, V0 + 1, RD + 2, RD + 3)
        a(f's_cbranch_vccnz {ok}' if ok == Lp else f's_cbranch_vccz {ok}')
    sweep(SETS[0])
    delay(max(d4, 0)); sweep(SETS[1])
    check(SETS[0], 15 + npub, Lp)
    a.label(Lok)
    a(f'buffer_store_dwordx2 {vr(V0,2)}, v{SS}, s[{WS}:{WS+3}], s{S_MST} offen')
    stamp(a, diag, 11)
    if 'dump' in opt:
        a(f's_lshl_b32 s{S_T0}, s{S_STEP}, 13'); a(f's_lshl_b32 s{S_T1}, s{S_H}, 8'); a(f's_add_u32 s{S_T0}, s{S_T0}, s{S_T1}'); a(f's_add_u32 s{S_T0}, s{S_T0}, {WS_MEMD:#x}')
        a(f'buffer_store_dwordx2 {vr(V0,2)}, v{SS}, s[{WS}:{WS+3}], s{S_T0} offen')
    a('s_barrier')
    stamp(a, diag, 12)
    a(f's_branch {Lhead}')
    a.label(Lp)
    sweep(SETS[0])
    check(SETS[1], 15 + npub, Lok2)
    Lp2 = a.newlabel('L_chp2')
    a.label(Lp2)
    sweep(SETS[1])
    check(SETS[0], 15, Lok2)
    sweep(SETS[0])
    check(SETS[1], 15, Lok2)
    a(f's_add_u32 s{S_SPIN}, s{S_SPIN}, 1')
    a(f's_cmp_gt_u32 s{S_SPIN}, {SPIN_MAX}')
    a(f's_cbranch_scc0 {Lp2}')
    a(f's_branch {fail}')
    a.label(Lok2)
    a(f'buffer_store_dwordx2 {vr(V0,2)}, v{SS}, s[{WS}:{WS+3}], s{S_MST} offen')
    if 'dump' in opt:
        a(f's_lshl_b32 s{S_T0}, s{S_STEP}, 13'); a(f's_lshl_b32 s{S_T1}, s{S_H}, 8'); a(f's_add_u32 s{S_T0}, s{S_T0}, s{S_T1}'); a(f's_add_u32 s{S_T0}, s{S_T0}, {WS_MEMD:#x}')
        a(f'buffer_store_dwordx2 {vr(V0,2)}, v{SS}, s[{WS}:{WS+3}], s{S_T0} offen')
    a('s_barrier')
    a(f's_branch {Lhead}')

    a.label(Lslowflag)
    flag_wait(S_NEED)
    a(f's_branch {Lflagok}')

    a.label(Lqx)
    a(f'v_cmp_eq_u32 vcc, s{S_SENT}, v{CK}')
    a(f'v_cmp_eq_u32 s[100:101], s{S_SENT}, v{CK+1}')
    a(f's_or_b64 vcc, vcc, s[100:101]')
    a(f's_cbranch_vccz {Lqok}')
    mem_dma()
    if diag: a('s_add_u32 s96, s96, 0x10000')
    a(f's_add_u32 s{S_SPIN}, s{S_SPIN}, 1')
    a(f's_cmp_gt_u32 s{S_SPIN}, {SPIN_MAX}')
    a(f's_cbranch_scc0 {Lq}')
    a(f's_branch {fail}')

    a.label(Lfb)
    a.fence(16)
    a('s_waitcnt vmcnt(0)')
    a(f's_sub_u32 s{S_T0}, s{S_KV}, {(0 if "samekv" in opt else 0x8000) - 8192 & 0xffffffff:#x}')
    for u in range(2):
        a(f'buffer_load_dwordx4 {vr(VX+4*u,4)}, v{L16}, s[{WS}:{WS+3}], s{S_T0} offen offset:{u*1024} sc1')
    a(f'v_max3_f32 v{MX}, v{X0}, v{X0+1}, v{X0+2}')
    a(f'v_max3_f32 v{MX}, v{MX}, v{X0+3}, v{X1}')
    a(f'v_max3_f32 v{MX}, v{MX}, v{X1+1}, v{X1+2}')
    a(f'v_max3_f32 v{MX}, v{MX}, v{X1+3}, v{Y}')
    a(f'v_max_f32 v{MX}, v{MX}, v{Y+1}')
    a(f'v_mov_b32 v{T1}, v{MX}'); a(sw(MX, T1)); a(f'v_max_f32 v{MX}, v{MX}, v{T1}')
    a(f'v_mov_b32 v{T1}, v{MX}'); a(f'v_permlane16_swap_b32 v{MX}, v{T1}'); a(f'v_max_f32 v{MX}, v{MX}, v{T1}')
    for r in range(8):
        a(f'v_sub_f32 v{O0+r}, v{X0+r}, v{MX}'); a(ex(O0 + r, O0 + r))
    for r in range(4): cvt(a, PX + r, O0 + 2 * r, O0 + 2 * r + 1)
    for r in range(2):
        a(f'v_sub_f32 v{Y+2+r}, v{Y+r}, v{MX}'); a(ex(Y + 2 + r, Y + 2 + r))
    cvt(a, PM, Y + 2, Y + 3); a(f'v_mov_b32 v{PM+1}, v{PM}'); a(sw(PM, PM + 1))
    a('s_waitcnt vmcnt(0)')
    mf32(a, LL, ONES, PX, '0'); mf32(a, O0, VX, PX, '0'); mf32(a, O1, VX + 4, PX, '0')
    mf16(a, LL, HALF, PM, LL); mf16(a, O0, V0, PM, O0); mf16(a, O1, V0 + 2, PM, O1)
    a.fence(12)
    vx_load()
    a(f'v_rcp_f32 v{MX}, v{LL}')
    for r in range(8): a(f'v_mul_f32 v{O0+r}, v{O0+r}, v{MX}')
    cvt(a, O0, O0, O0 + 1); cvt(a, O0 + 1, O0 + 2, O0 + 3); cvt(a, O1, O1, O1 + 1); cvt(a, O1 + 1, O1 + 2, O1 + 3)
    a(f'ds_write_b64 v{OW}, {vr(O0,2)}')
    a(f's_branch {Lfbret}')

    a.label(Llast)
    a(f's_mov_b64 exec, s[{S_WM}:{S_WM+1}]')
    a(f'buffer_store_dwordx2 {vr(V0,2)}, v{SS}, s[{WS}:{WS+3}], s{S_KM} offen sc1')
    a('s_mov_b64 exec, -1')
    if standalone:
        a('s_memtime s[98:99]')
        a('s_waitcnt lgkmcnt(0)')
        a(f'v_mov_b32 v{MA}, s78'); a(f'v_mov_b32 v{MA+1}, s76'); a(f'v_mov_b32 v{MA+2}, s98'); a(f'v_mov_b32 v{MA+3}, s96')
        a(f's_lshl_b32 s{S_T0}, s{S_H}, 4'); a(f's_add_u32 s{S_T0}, s{S_T0}, {WS_STAMP + 0x10000:#x}')
        a(f's_cmp_eq_u32 s{S_W}, 0')
        a(f's_cbranch_scc0 {done}')
        a(f'buffer_store_dwordx4 {vr(MA,4)}, off, s[{WS}:{WS+3}], s{S_T0}')
    a(f's_branch {done}')
```

```python
from asmgen import *

KA = dict(x=0, mem0=8, Wq=16, Wk=24, Wv=32, Wo=40, w1=64, w2=72, c=80, wmod=88, out=96, dbg=104, ws=112)
WS_MOD   = 0x0000000
WS_FLAG  = 0x0010000
WS_STAMP = 0x0020000
WS_JUNK  = 0x00F0000
WS_PART  = 0x0100000
WS_MEMR  = 0x0180000
WS_MEMG  = 0x1200000
WS_MEMD  = 0x0190000
WS_H1    = 0x0200000
WS_H2    = 0x0400000
WS_X1    = 0x0600000
WS_APART = 0x0A00000
WS_FPART = 0x0E00000
WS_QKV   = 0x2000000
WS_SIZE  = 0x10000000
SENT = 0x7F817F81
SPIN_MAX = 400000
SCALE_LOG2E = (128 ** -0.5) * 1.4426950408889634

import struct
def f32bits(x): return struct.unpack('<I', struct.pack('<f', x))[0]

class VmTrack:
    def __init__(self): self.ops = []
    def add(self, tag): self.ops.append(tag)
    def after(self, tag):
        idx = max(i for i, t in enumerate(self.ops) if t == tag)
        return len(self.ops) - 1 - idx

def srd(a, s, lo, hi, size):
    a(f's_mov_b32 s{s}, s{lo}')
    a(f's_and_b32 s{s+1}, s{hi}, 0xffff')
    a(f's_mov_b32 s{s+2}, {size:#x}')
    a(f's_mov_b32 s{s+3}, 0x20000')

DBG_RANK0 = 0; DBG_CHAIN = 4; DBG_ERR = 64
DBG_RANK = 128
DBG_MOD = 160; DBG_LN1 = 164
N_MOD = 96; N_LN1 = 128
NAME = 'adaLN_cond__memory_aug_recurrent_mem_tr__dense_activation_silu__prompt_kernel'

def header(name, lds=163840, grid=256):
    return f"""; @launch grid=({grid},1,1) block=(256,1,1) lds={lds}
.amdgcn_target "amdgcn-amd-amdhsa--gfx950"
.text
.globl {name}
.p2align 8
.type {name},@function
{name}:
"""
def footer(name):
    return f""".section .rodata,"a"
.p2align 6
.amdhsa_kernel {name}
  .amdhsa_next_free_vgpr 512
  .amdhsa_next_free_sgpr 102
  .amdhsa_accum_offset 256
  .amdhsa_group_segment_fixed_size 0
  .amdhsa_kernarg_size 120
  .amdhsa_user_sgpr_count 2
  .amdhsa_user_sgpr_kernarg_segment_ptr 1
  .amdhsa_system_sgpr_workgroup_id_x 1
.end_amdhsa_kernel
"""

def prologue(a):
    a('s_cmp_ge_u32 s2, 256')
    a('s_cbranch_scc1 L_end')
    a(f's_load_dwordx4 s[44:47], s[0:1], {KA["dbg"]}')
    a('s_getreg_b32 s5, hwreg(HW_REG_XCC_ID, 0, 4)')
    a('v_lshrrev_b32 v1, 6, v0')
    a('s_and_b32 s5, s5, 7')
    a('v_readfirstlane_b32 s3, v1')
    a('s_lshl_b32 s6, s5, 2')
    a(f's_add_u32 s6, s6, {DBG_RANK}')
    a('s_cmp_eq_u32 s5, 0')
    a(f's_cselect_b32 s6, {DBG_RANK0}, s6')
    a('s_waitcnt lgkmcnt(0)')
    srd(a, 16, 44, 45, 256)
    srd(a, 8, 46, 47, WS_SIZE)
    a('s_cmp_eq_u32 s3, 0')
    a('s_cbranch_scc0 L_rank_wait')
    a('v_mov_b32 v1, 1')
    a('s_mov_b64 exec, 1')
    a('buffer_atomic_add v1, off, s[16:19], s6 sc0 sc1')
    a('s_waitcnt vmcnt(0)')
    a('v_mov_b32 v2, 0')
    a('ds_write_b32 v2, v1')
    a('s_waitcnt lgkmcnt(0)')
    a('s_mov_b64 exec, -1')
    a.label('L_rank_wait')
    a('s_barrier')
    a('v_mov_b32 v2, 0')
    a('ds_read_b32 v1, v2')
    a('s_waitcnt lgkmcnt(0)')
    a('v_readfirstlane_b32 s4, v1')
    a('s_barrier')
    a('s_cmp_ge_u32 s4, 32')
    a('s_cbranch_scc1 L_fail')

def epilogue(a, timing=False):
    a.label('L_fail')
    a('v_mov_b32 v1, 1')
    a('s_mov_b64 exec, 1')
    a(f'buffer_atomic_add v1, off, s[16:19], 0 offset:{DBG_ERR} sc1')
    a.label('L_done')
    if timing:
        a('s_mov_b64 exec, -1')
        a('s_memtime s[98:99]'); a('s_memrealtime s[96:97]')
        a('s_waitcnt lgkmcnt(0)')
        a('v_mov_b32 v0, s78'); a('v_mov_b32 v1, s76'); a('v_mov_b32 v2, s98'); a('v_mov_b32 v3, s96')
        a('s_lshl_b32 s20, s5, 5'); a('s_add_u32 s20, s20, s4'); a('s_lshl_b32 s20, s20, 4'); a(f's_add_u32 s20, s20, {WS_STAMP + 0x20000:#x}')
        a('buffer_store_dwordx4 v[0:3], off, s[8:11], s20')
    a('s_waitcnt vmcnt(0)')
    a.label('L_end')
    a('s_endpgm')
DBG_GRP = 176
```

```python
from common import *
from chain import mf32, mf16, cvt

S_W, S_R, S_X = 3, 4, 5
WS, TS, DB = 8, 12, 16
sw32 = lambda x, y: f'v_permlane32_swap_b32 v{x}, v{y}'
sw16 = lambda x, y: f'v_permlane16_swap_b32 v{x}, v{y}'
LOG2E = 1.4426950408889634

def spin(a, s, fail):
    a(f's_add_u32 s{s}, s{s}, 1')
    a(f's_cmp_gt_u32 s{s}, {SPIN_MAX}')
    a(f's_cbranch_scc1 {fail}')

def arrive(a, off, vt):
    L = a.newlabel('L_ar')
    a(f's_cmp_eq_u32 s{S_W}, 0')
    a(f's_cbranch_scc0 {L}')
    a(f'v_mov_b32 v{vt}, 1')
    a('s_mov_b64 exec, 1')
    if isinstance(off, int): a(f'buffer_atomic_add v{vt}, off, s[{DB}:{DB+3}], 0 offset:{off} sc1')
    else: a(f'buffer_atomic_add v{vt}, off, s[{DB}:{DB+3}], {off} sc1')
    a('s_mov_b64 exec, -1')
    a.label(L)

def wait_counter(a, off, n, vt, ss, fail, sleep=2):
    L = a.newlabel('L_wc')
    a(f's_mov_b32 s{ss}, 0')
    a.label(L)
    if isinstance(off, int): a(f'buffer_load_dword v{vt}, off, s[{DB}:{DB+3}], 0 offset:{off} sc1')
    else: a(f'buffer_load_dword v{vt}, off, s[{DB}:{DB+3}], {off} sc1')
    spin(a, ss, fail)
    a('s_waitcnt vmcnt(0)')
    a(f'v_cmp_gt_u32 vcc, {n}, v{vt}' if n <= 64 else f'v_cmp_gt_u32 vcc, {n:#x}, v{vt}')
    L2 = a.newlabel('L_wd')
    a(f's_cbranch_vccz {L2}')
    a(f's_sleep {sleep}')
    a(f's_branch {L}')
    a.label(L2)

def unpack(a, d_lo, d_hi, s):
    a(f'v_lshlrev_b32 v{d_lo}, 16, v{s}')
    a(f'v_and_b32 v{d_hi}, 0xffff0000, v{s}')

def rbf(a, d, s):
    a(f'v_cvt_pk_bf16_f32 v{d}, v{s}, v{s}')
    a(f'v_lshlrev_b32 v{d}, 16, v{d}')

def group_sum(a, x, t):
    a(f'v_mov_b32 v{t}, v{x}'); a(sw32(x, t)); a(f'v_add_f32 v{x}, v{x}, v{t}')
    a(f'v_mov_b32 v{t}, v{x}'); a(sw16(x, t)); a(f'v_add_f32 v{x}, v{x}, v{t}')

def silu(a, x, t, s_nl2e):
    a(f'v_mul_f32 v{t}, s{s_nl2e}, v{x}')
    a(f'v_exp_f32 v{t}, v{t}')
    a(f'v_add_f32 v{t}, 1.0, v{t}')
    a(f'v_rcp_f32 v{t}, v{t}')
    a(f'v_mul_f32 v{x}, v{x}, v{t}')

def gen_front(a, fail='L_fail'):
    a.comment('================= front work: mod + LN1 =================')
    SC, T0, T1, SP, NL = 20, 21, 22, 23, 24
    PX, PC, PM, PM0 = 60, 62, 64, 66
    a(f's_load_dwordx4 s[{60}:{63}], s[0:1], {KA["x"]}')
    a(f's_load_dwordx4 s[{64}:{67}], s[0:1], {KA["c"]}')
    a(f's_sub_u32 s{SC}, s{S_X}, 4'); a(f's_lshl_b32 s{SC}, s{SC}, 5'); a(f's_add_u32 s{SC}, s{SC}, s{S_R}')
    a(f's_mov_b32 s{NL}, {f32bits(-LOG2E):#x}')
    ln, g, c, L16 = 1, 2, 3, 4
    a(f'v_and_b32 v{ln}, 63, v0'); a(f'v_lshrrev_b32 v{g}, 4, v{ln}'); a(f'v_and_b32 v{c}, 15, v{ln}'); a(f'v_lshlrev_b32 v{L16}, 4, v{ln}')
    a(f'v_lshlrev_b32 v5, 10, v{c}'); a(f'v_lshl_add_u32 v5, v{g}, 4, v5')
    a(f's_lshl_b32 s{T0}, s{SC}, 14'); a(f's_lshl_b32 s{T1}, s{S_W}, 8'); a(f's_add_u32 s{T0}, s{T0}, s{T1}')
    a('s_waitcnt lgkmcnt(0)')
    srd(a, TS, 60, 61, 2 << 20)
    XR = 16
    for i in range(4): a(f'buffer_load_dwordx4 {vr(XR+4*i,4)}, v5, s[{TS}:{TS+3}], s{T0} offen offset:{64*i}')
    Lnomod = a.newlabel('L_nomod')
    a(f's_cmp_ge_u32 s{SC}, {N_MOD}')
    a(f's_cbranch_scc1 {Lnomod}')
    srd(a, 28, 64, 65, 1024); srd(a, 32, 66, 67, 512 * 6144)
    a('v_lshrrev_b32 v6, 2, v0'); a('v_lshlrev_b32 v7, 1, v6')
    CR, WR, AC = 32, 40, 72
    for i in range(8): a(f'buffer_load_ushort v{CR+i}, v7, s[28:31], 0 offen offset:{128*i}')
    a(f's_mov_b32 s{T0}, 6144'); a(f'v_mul_lo_u32 v8, v6, s{T0}'); a('v_and_b32 v9, 3, v0'); a('v_lshl_add_u32 v8, v9, 4, v8')
    a(f's_lshl_b32 s{T0}, s{SC}, 6')
    for i in range(8):
        a(f'buffer_load_dwordx4 {vr(WR+4*i,4)}, v8, s[32:35], s{T0} offen')
        if i < 7: a(f's_add_u32 s{T0}, s{T0}, {64*6144}')
    a('s_waitcnt vmcnt(8)')
    for i in range(8):
        a(f'v_lshlrev_b32 v{CR+i}, 16, v{CR+i}'); silu(a, CR + i, 10, NL); rbf(a, CR + i, CR + i)
    for i in range(8):
        a(f's_waitcnt vmcnt({7-i})')
        for k in range(4):
            unpack(a, 10, 11, WR + 4 * i + k)
            if i == 0:
                a(f'v_mul_f32 v{AC+2*k}, v{CR}, v10'); a(f'v_mul_f32 v{AC+2*k+1}, v{CR}, v11')
            else:
                a(f'v_fmac_f32 v{AC+2*k}, v{CR+i}, v10'); a(f'v_fmac_f32 v{AC+2*k+1}, v{CR+i}, v11')
    a('v_lshlrev_b32 v10, 5, v6'); a(f's_mov_b32 s{T0}, 2080'); a(f'v_mad_u32_u24 v10, v9, s{T0}, v10')
    a(f'ds_write_b128 v10, {vr(AC,4)} offset:4096'); a(f'ds_write_b128 v10, {vr(AC+4,4)} offset:4112')
    a('s_waitcnt lgkmcnt(0)'); a('s_barrier')
    a('v_and_b32 v10, 31, v0'); a('v_lshrrev_b32 v11, 5, v0')
    a('v_lshrrev_b32 v12, 3, v10'); a(f'v_mul_u32_u24 v12, 2080, v12'); a('v_and_b32 v13, 7, v10'); a('v_lshl_add_u32 v12, v13, 2, v12')
    a('v_lshl_add_u32 v12, v11, 8, v12')
    for k in range(8): a(f'ds_read_b32 v{AC+k}, v12 offset:{4096 + 32*k}')
    a('s_waitcnt lgkmcnt(0)')
    for k in range(1, 8): a(f'v_add_f32 v{AC}, v{AC}, v{AC+k}')
    a('v_lshlrev_b32 v12, 2, v0')
    a(f'ds_write_b32 v12, v{AC}')
    a('s_waitcnt lgkmcnt(0)'); a('s_barrier')
    a('v_lshlrev_b32 v12, 2, v10')
    for k in range(8): a(f'ds_read_b32 v{AC+k}, v12 offset:{128*k}')
    a('s_waitcnt lgkmcnt(0)')
    for k in range(1, 8): a(f'v_add_f32 v{AC}, v{AC}, v{AC+k}')
    cvt(a, AC, AC, AC)
    a('v_lshlrev_b32 v12, 1, v10')
    a(f's_lshl_b32 s{T0}, s{SC}, 6'); a(f's_add_u32 s{T0}, s{T0}, {WS_MOD}')
    Lst = a.newlabel('L_ms')
    a(f's_cmp_eq_u32 s{S_W}, 0'); a(f's_cbranch_scc0 {Lst}')
    a(f'buffer_store_short v{AC}, v12, s[{WS}:{WS+3}], s{T0} offen sc1')
    a('s_waitcnt vmcnt(0)')
    a.label(Lst)
    arrive(a, DBG_MOD, 10)
    a.label(Lnomod)
    a(f'v_mov_b32 v40, {SENT:#x}')
    for k in range(1, 4): a(f'v_mov_b32 v{40+k}, v40')
    a(f's_lshl_b32 s{T0}, s{SC}, 14'); a(f's_lshl_b32 s{T1}, s{S_W}, 12'); a(f's_add_u32 s{T0}, s{T0}, s{T1}')
    a(f's_add_u32 s{T1}, s{T0}, {WS_X1:#x}'); a(f's_add_u32 s{T0}, s{T0}, {WS_H2:#x}')
    for k in range(4):
        a(f'buffer_store_dwordx4 v[40:43], v{L16}, s[{WS}:{WS+3}], s{T0} offen offset:{1024*k} sc1')
        a(f'buffer_store_dwordx4 v[40:43], v{L16}, s[{WS}:{WS+3}], s{T1} offen offset:{1024*k} sc1')
    Lm0 = a.newlabel('L_m0')
    a(f's_cmp_ge_u32 s{SC}, 2'); a(f's_cbranch_scc1 {Lm0}')
    srd(a, 28, 62, 63, 8192)
    a(f'v_and_b32 v10, 7, v{ln}'); a('v_lshlrev_b32 v10, 10, v10'); a(f'v_lshl_add_u32 v10, v{g}, 5, v10')
    a(f'v_bfe_u32 v11, v{ln}, 3, 1'); a('v_lshl_add_u32 v10, v11, 4, v10')
    a(f's_lshl_b32 s{T0}, s{SC}, 9'); a(f's_lshl_b32 s{T1}, s{S_W}, 7'); a(f's_add_u32 s{T0}, s{T0}, s{T1}')
    a(f'buffer_load_dwordx4 v[40:43], v10, s[28:31], s{T0} offen')
    a('s_waitcnt vmcnt(0)')
    a.label(Lm0)
    a(f's_lshl_b32 s{T0}, s{SC}, 12'); a(f's_lshl_b32 s{T1}, s{S_W}, 10'); a(f's_add_u32 s{T0}, s{T0}, s{T1}'); a(f's_add_u32 s{T0}, s{T0}, {WS_MEMG:#x}')
    a(f'buffer_store_dwordx4 v[40:43], v{L16}, s[{WS}:{WS+3}], s{T0} offen sc1')
    a('v_mov_b32 v44, 0')
    a(f's_lshl_b32 s{T0}, s{SC}, 5'); a(f's_add_u32 s{T0}, s{T0}, {WS_FLAG:#x}')
    a('v_and_b32 v10, 7, v0'); a('v_lshlrev_b32 v10, 2, v10')
    a(f'buffer_store_dword v44, v10, s[{WS}:{WS+3}], s{T0} offen sc1')
    XF = 80
    a('s_waitcnt vmcnt(10)')
    for k in range(16): unpack(a, XF + 2 * k, XF + 2 * k + 1, XR + k)
    a(f'v_add_f32 v10, v{XF}, v{XF+1}')
    for k in range(2, 32): a(f'v_add_f32 v10, v10, v{XF+k}')
    group_sum(a, 10, 11)
    LB = 12544
    a(f's_lshl_b32 s{T0}, s{S_W}, 6'); a(f'v_lshlrev_b32 v12, 2, v{c}'); a(f'v_add_u32 v13, s{T0}, v12')
    a(f'ds_write_b32 v13, v10 offset:{LB}')
    a('s_waitcnt lgkmcnt(0)'); a('s_barrier')
    for k in range(4): a(f'ds_read_b32 v{44+k}, v12 offset:{LB + 64*k}')
    a('s_waitcnt lgkmcnt(0)')
    a('v_add_f32 v44, v44, v45'); a('v_add_f32 v46, v46, v47'); a('v_add_f32 v44, v44, v46')
    a(f'v_mul_f32 v44, {f32bits(1/512):#x}, v44')
    for k in range(32): a(f'v_sub_f32 v{XF+k}, v{XF+k}, v44')
    a(f'v_mul_f32 v10, v{XF}, v{XF}')
    for k in range(1, 32): a(f'v_fmac_f32 v10, v{XF+k}, v{XF+k}')
    group_sum(a, 10, 11)
    a(f'ds_write_b32 v13, v10 offset:{LB+256}')
    a('s_waitcnt lgkmcnt(0)'); a('s_barrier')
    for k in range(4): a(f'ds_read_b32 v{44+k}, v12 offset:{LB + 256 + 64*k}')
    a('s_waitcnt lgkmcnt(0)')
    a('v_add_f32 v44, v44, v45'); a('v_add_f32 v46, v46, v47'); a('v_add_f32 v44, v44, v46')
    a(f'v_mov_b32 v45, {f32bits(1e-5):#x}')
    a(f'v_fmac_f32 v45, {f32bits(1/512):#x}, v44')
    a('v_rsq_f32 v45, v45')
    wait_counter(a, DBG_MOD, N_MOD, 10, SP, fail)
    a(f'v_lshlrev_b32 v10, 4, v{g}')
    a(f's_lshl_b32 s{T0}, s{S_W}, 8'); a(f's_add_u32 s{T0}, s{T0}, {WS_MOD}')
    for i in range(4):
        a(f'buffer_load_dwordx4 {vr(48+4*i,4)}, v10, s[{WS}:{WS+3}], s{T0} offen offset:{64*i} sc1')
        a(f'buffer_load_dwordx4 {vr(64+4*i,4)}, v10, s[{WS}:{WS+3}], s{T0} offen offset:{1024+64*i} sc1')
    for k in range(32): a(f'v_mul_f32 v{XF+k}, v{XF+k}, v45')
    a('s_waitcnt vmcnt(0)')
    for k in range(16):
        unpack(a, 10, 11, 64 + k); a('v_add_f32 v10, 1.0, v10'); a('v_add_f32 v11, 1.0, v11')
        unpack(a, 12, 13, 48 + k)
        a(f'v_fma_f32 v12, v{XF+2*k}, v10, v12'); a(f'v_fma_f32 v13, v{XF+2*k+1}, v11, v13')
        cvt(a, XR + k, 12, 13)
    a(f's_lshl_b32 s{T0}, s{SC}, 14'); a(f's_lshl_b32 s{T1}, s{S_W}, 12'); a(f's_add_u32 s{T0}, s{T0}, s{T1}'); a(f's_add_u32 s{T0}, s{T0}, {WS_H1:#x}')
    for i in range(4): a(f'buffer_store_dwordx4 {vr(XR+4*i,4)}, v{L16}, s[{WS}:{WS+3}], s{T0} offen offset:{1024*i} sc1')
    a('s_waitcnt vmcnt(0)'); a('s_barrier')
    arrive(a, DBG_LN1, 10)

class Stager:
    def __init__(self, a, base, slots):
        self.a, self.base, self.slots = a, base, slots
        self.units = []
    def add(self, issue, read): self.units.append((issue, read))
    def run(self, vm=None, mid=None):
        a = self.a; vm = vm or VmTrack()
        n = len(self.units); nxt = 0
        def iss():
            nonlocal nxt
            self.units[nxt][0](self.base + (nxt % self.slots) * 16384)
            for _ in range(4): vm.add(('u', nxt))
            nxt += 1
        while nxt < min(n, self.slots): iss()
        for i in range(n):
            a(f's_waitcnt vmcnt({min(63, vm.after(("u", i)))}) lgkmcnt(0)')
            a('s_barrier')
            if i > 0 and nxt < n: iss()
            if mid: mid(i, vm)
            self.units[i][1](self.base + (i % self.slots) * 16384)
        a('s_waitcnt lgkmcnt(0)')
        a('s_barrier')

def dma4(a, vregs, srd_, s_off, step, lds, s_m, wave_lds=4096):
    a(f's_lshl_b32 s{s_m}, s{S_W}, 12'); a(f's_add_u32 s{s_m}, s{s_m}, {lds}')
    for i in range(4):
        a(f's_mov_b32 m0, s{s_m}')
        if i < 3: a(f's_add_u32 s{s_m}, s{s_m}, 1024')
        a(f'buffer_load_dwordx4 v{vregs[i]}, s[{srd_}:{srd_+3}], s{s_off} offen lds')
        if i < 3: a(f's_add_u32 s{s_off}, s{s_off}, {step}')

def tr(a, kind, b, addr, off, tmp):
    if off < 65536: a(f'ds_read_b64_tr_b16 {kind}[{b}:{b+1}], v{addr} offset:{off}')
    else:
        hi = off & ~0x7fff
        a(f'v_add_u32 v{tmp}, {hi}, v{addr}')
        a(f'ds_read_b64_tr_b16 {kind}[{b}:{b+1}], v{tmp} offset:{off-hi}')

def lane_parts(a, ln, g, c, rp, cp):
    a(f'v_and_b32 v{ln}, 63, v0'); a(f'v_lshrrev_b32 v{g}, 4, v{ln}'); a(f'v_and_b32 v{c}, 15, v{ln}')
    a(f'v_lshrrev_b32 v{rp}, 2, v{c}'); a(f'v_and_b32 v{cp}, 3, v{c}')

def gen_qkv(a, fail='L_fail', done='L_done'):
    a.comment('================= QKV role =================')
    T0, T1, SP, SO, SM, SEG, SDST, SSRC, SFL, CS = range(20, 30)
    a(f's_cmp_eq_u32 s{S_X}, 3'); a(f's_lshl_b32 s{T0}, s{S_X}, 3'); a(f's_add_u32 s{T0}, s{T0}, 16')
    a(f's_cmp_eq_u32 s{S_X}, 3'); a(f's_cselect_b32 s{T0}, 16, s{T0}')
    a(f's_load_dwordx2 s[60:61], s[0:1], s{T0}')
    ln, g, c, rp, cp, L16 = 1, 2, 3, 4, 5, 6
    lane_parts(a, ln, g, c, rp, cp); a(f'v_lshlrev_b32 v{L16}, 4, v{ln}')
    for hv in range(2):
        a(f'v_or_b32 v10, {hv<<2}, v{g}'); a('v_lshlrev_b32 v10, 1, v10'); a(f'v_xor_b32 v10, v10, v{c}')
        a('v_lshlrev_b32 v10, 4, v10'); a(f'v_lshl_add_u32 v{8+hv}, v{g}, 13, v10')
    a(f'v_lshl_add_u32 v10, v{g}, 3, v{rp}'); a(f'v_and_b32 v11, 1, v{g}'); a(f'v_lshl_add_u32 v11, v11, 2, v{rp}')
    a(f's_lshl_b32 s{T0}, s{S_W}, 1'); a(f'v_xor_b32 v11, s{T0}, v11'); a('v_lshlrev_b32 v11, 5, v11')
    a('v_lshl_add_u32 v11, v10, 8, v11'); a(f'v_lshl_add_u32 v12, v{cp}, 3, v11'); a('v_xor_b32 v13, 32, v12')
    a('s_waitcnt lgkmcnt(0)')
    srd(a, TS, 60, 61, 4 << 20)
    st = Stager(a, 0, 8)
    for un in range(8):
        def issue(lds, un=un):
            a(f's_lshl_b32 s{SO}, s{S_W}, 17'); a(f's_lshl_b32 s{T0}, s{S_R}, 8'); a(f's_add_u32 s{SO}, s{SO}, s{T0}'); a(f's_add_u32 s{SO}, s{SO}, {un*64*8192:#x}')
            dma4(a, (8, 8, 9, 9), TS, SO, 4 * 8192, lds, SM)
        def read(lds, un=un):
            for k2 in range(2):
                for u in range(2):
                    for x in range(2):
                        tr(a, 'a', ((un * 2 + k2) * 2 + u) * 4 + 2 * x, 12 + u, lds + (32 * k2 + 4 * x) * 256, 14)
        st.add(issue, read)
    st.run()
    wait_counter(a, DBG_LN1, N_LN1, 10, SP, fail)
    a(f's_lshl_b32 s{SDST}, s{S_R}, 21'); a(f's_and_b32 s{T0}, s{S_X}, 3'); a(f's_cmp_eq_u32 s{S_X}, 3'); a(f's_cselect_b32 s{T0}, 0, s{T0}')
    a(f's_lshl_b32 s{T1}, s{T0}, 13'); a(f's_add_u32 s{SDST}, s{SDST}, s{T1}'); a(f's_add_u32 s{SDST}, s{SDST}, {WS_QKV:#x}')
    a(f's_sub_u32 s{T0}, s{S_X}, 1'); a(f's_lshl_b32 s{T0}, s{T0}, 4'); a(f's_lshl_b32 s{SFL}, s{S_R}, 7'); a(f's_add_u32 s{SFL}, s{SFL}, s{T0}'); a(f's_add_u32 s{SFL}, s{SFL}, {WS_FLAG:#x}')
    a(f's_cmp_eq_u32 s{S_X}, 1'); a(f's_cselect_b32 s{CS}, {f32bits(SCALE_LOG2E):#x}, 1.0')
    a(f's_lshl_b32 s{SSRC}, s{S_W}, 13'); a(f's_add_u32 s{SSRC}, s{SSRC}, {WS_H1:#x}')
    a(f's_lshl_b32 s{SM}, s{S_W}, 13')
    def h_dma():
        a(f's_add_u32 s{T0}, s{SSRC}, 4096'); a(f's_add_u32 s{T1}, s{SM}, 4096')
        a(f's_mov_b32 m0, s{SM}')
        for i in range(4): a(f'buffer_load_dwordx4 v{L16}, s[{WS}:{WS+3}], s{SSRC} offen offset:{1024*i} sc1 lds')
        a(f's_mov_b32 m0, s{T1}')
        for i in range(4): a(f'buffer_load_dwordx4 v{L16}, s[{WS}:{WS+3}], s{T0} offen offset:{1024*i} sc1 lds')
        a(f's_add_u32 s{SSRC}, s{SSRC}, 0x8000'); a(f's_add_u32 s{SM}, s{SM}, 0x8000'); a(f's_and_b32 s{SM}, s{SM}, 0x1ffff')
    for _ in range(3): h_dma()
    a(f's_mov_b32 s{SEG}, 0')
    a(f'v_mov_b32 v15, v{L16}')
    Lv = a.newlabel('L_qv')
    a(f's_cmp_eq_u32 s{S_X}, 2'); a(f's_cbranch_scc1 {Lv}')
    AC, HF = 16, 32
    for isv in (False, True):
        if isv: a.label(Lv)
        a(f's_lshl_b32 s{T0}, s{S_W}, {11 if isv else 10}'); a(f's_add_u32 s{SDST}, s{SDST}, s{T0}')
        Lp = a.newlabel('L_ql'); Lnf = a.newlabel('L_qnf')
        a(f's_waitcnt vmcnt(16)')
        a.label(Lp)
        a('s_barrier')
        h_dma()
        a(f's_cmp_eq_u32 s{S_W}, 0'); a(f's_cbranch_scc0 {Lnf}')
        a(f's_max_i32 s{T0}, s{SEG}, 1'); a(f's_sub_u32 s{T0}, s{T0}, 1'); a(f'v_mov_b32 v10, s{T0}')
        a('s_mov_b64 exec, 1'); a(f'buffer_store_dword v10, off, s[{WS}:{WS+3}], s{SFL} sc1'); a('s_mov_b64 exec, -1')
        a.label(Lnf)
        order = [(ks, tt) for ks in range(16) for tt in range(2)]
        def rd(i):
            ks, tt = order[i]
            a(f'ds_read_b128 {vr(HF + 4*(i % 16), 4)}, v15 offset:{(tt*16 + ks)*1024}')
        for i in range(8): rd(i)
        for i, (ks, tt) in enumerate(order):
            a(f's_waitcnt lgkmcnt({min(7, 31 - i)})')
            for u in range(2):
                W = f'a[{(ks*2+u)*4}:{(ks*2+u)*4+3}]'; H = vr(HF + 4 * (i % 16), 4)
                D = vr(AC + (4 * (2 * tt + u) if not isv else 4 * (2 * u + tt)), 4)
                A_, B_ = (H, W) if isv else (W, H)
                a(f'v_mfma_f32_16x16x32_bf16 {D}, {A_}, {B_}, {"0" if ks == 0 else D}')
                if u == 0 and i + 8 < 32: rd(i + 8)
        a('v_add_u32 v15, 0x8000, v15'); a('v_and_b32 v15, 0x1ffff, v15')
        for k in range(16): a(f'v_mul_f32 v{AC+k}, s{CS}, v{AC+k}')
        for k in range(8): cvt(a, 96 + k, AC + 2 * k, AC + 2 * k + 1)
        a(f'buffer_store_dwordx4 v[96:99], v{L16}, s[{WS}:{WS+3}], s{SDST} offen sc1')
        if isv: a(f'buffer_store_dwordx4 v[100:103], v{L16}, s[{WS}:{WS+3}], s{SDST} offen offset:1024 sc1')
        else:
            a(f's_add_u32 s{T0}, s{SDST}, 4096')
            a(f'buffer_store_dwordx4 v[100:103], v{L16}, s[{WS}:{WS+3}], s{T0} offen sc1')
        a(f's_add_u32 s{SDST}, s{SDST}, 0x8000')
        a(f's_add_u32 s{SEG}, s{SEG}, 1')
        a(f's_cmp_lt_u32 s{SEG}, 64')
        a('s_waitcnt vmcnt(10)')
        a(f's_cbranch_scc1 {Lp}')
        a('s_waitcnt vmcnt(0)'); a('s_barrier')
        a(f's_cmp_eq_u32 s{S_W}, 0'); a(f's_cbranch_scc0 {done}')
        a('v_mov_b32 v10, 64')
        a('s_mov_b64 exec, 1'); a(f'buffer_store_dword v10, off, s[{WS}:{WS+3}], s{SFL} sc1')
        a(f's_branch {done}')

def make_selector(a, ln, dst, t1, t2, t3):
    a(f'v_and_b32 v{t1}, 7, v{ln}'); a(f'v_and_b32 v{t2}, 1, v{ln}'); a(f'v_lshlrev_b32 v{t2}, 4, v{t2}')
    a(f'v_mov_b32 v{t3}, 0x3f80'); a(f'v_lshlrev_b32 v{t3}, v{t2}, v{t3}'); a(f'v_lshrrev_b32 v{t1}, 1, v{t1}')
    for r in range(4):
        a(f'v_cmp_eq_u32 vcc, {r}, v{t1}'); a(f'v_cndmask_b32 v{dst+r}, 0, v{t3}, vcc')

def row_addrs(a, g, c, PSA, RLA, RO, t):
    a(f'v_lshlrev_b32 v{t}, 4, v{g}'); a(f'v_lshl_add_u32 v{PSA}, v{c}, 15, v{t}')
    a(f'v_lshlrev_b32 v{t}, 4, v{c}'); a(f'v_lshl_add_u32 v{RLA}, v{g}, 10, v{t}')
    a(f'v_lshrrev_b32 v{t}, 2, v{c}'); a(f'v_lshlrev_b32 v{RO}, 6, v{t}')
    a(f'v_and_b32 v{t}, 1, v{g}'); a(f'v_lshl_add_u32 v{RO}, v{t}, 5, v{RO}')
    a(f'v_and_b32 v{t}, 3, v{c}'); a(f'v_lshl_add_u32 v{RO}, v{t}, 3, v{RO}')
    a(f's_lshl_b32 s21, s{S_W}, 8'); a(f'v_add_u32 v{RO}, s21, v{RO}')

def ring_init(a, L16, s_base, t, s_t):
    a(f'v_mov_b32 v{t}, 1')
    for k in range(1, 4): a(f'v_mov_b32 v{t+k}, 0')
    a(f's_lshl_b32 s{s_t}, s{S_R}, 15'); a(f's_add_u32 s{s_t}, s{s_t}, s{s_base}')
    a(f's_lshl_b32 s21, s{S_W}, 13'); a(f's_add_u32 s{s_t}, s{s_t}, s21')
    for sl in range(2):
        for hh in range(2):
            for k in range(4): a(f'buffer_store_dwordx4 {vr(t,4)}, v{L16}, s[{WS}:{WS+3}], s{s_t} offen offset:{1024*k}')
            a(f's_add_u32 s{s_t}, s{s_t}, {4096 if hh == 0 else 0x100000 - 4096}')

def reduce_rows(a, n, PB, RD, TG, SEL, RLA, s_src, s_par, s_t, s_sp, fail, pre=None):
    Lp = a.newlabel('L_rp')
    a(f's_mov_b32 s{s_sp}, 0')
    a.label(Lp)
    a(f's_mov_b32 s{s_t}, s{s_src}')
    for i in range(n):
        a(f'buffer_load_dwordx4 {vr(PB+4*i,4)}, v{RLA}, s[{WS}:{WS+3}], s{s_t} offen sc1')
        if i < n - 1: a(f's_add_u32 s{s_t}, s{s_t}, 4096')
    spin(a, s_sp, fail)
    for i in range(n):
        a(f's_waitcnt vmcnt({n-1-i})')
        mf32(a, RD, SEL, PB + 4 * i, '0' if i == 0 else RD)
        if i == 0: a(f'v_xor_b32 v{TG}, s{s_par}, v{PB}')
        else: a(f'v_bitop3_b32 v{TG}, v{TG}, v{PB+4*i}, s{s_par} bitop3:0xf6')
    a(f'v_and_b32 v{TG}, 1, v{TG}')
    a(f'v_cmp_ne_u32 vcc, 0, v{TG}')
    a(f's_cbranch_vccnz {Lp}')

def row16_sum(a, x):
    for r in (8, 4, 2, 1):
        a(f'v_add_f32_dpp v{x}, v{x}, v{x} row_ror:{r} row_mask:0xf bank_mask:0xf')

def wave_row_total(a, x, t, lds_w, lds_off, q):
    row16_sum(a, x)
    a(f'v_mov_b32 v{t}, v{x}'); a(sw16(x, t)); a(f'v_add_f32 v{x}, v{x}, v{t}')
    a(f'ds_write_b32 v{lds_w}, v{x} offset:{lds_off}')
    a('s_waitcnt lgkmcnt(0)'); a('s_barrier')
    a(f'v_mov_b32 v{t}, 0')
    a(f'ds_read_b128 {vr(q,4)}, v{t} offset:{lds_off}')
    a('s_waitcnt lgkmcnt(0)')
    a(f'v_add_f32 v{q}, v{q}, v{q+1}'); a(f'v_add_f32 v{q+2}, v{q+2}, v{q+3}'); a(f'v_add_f32 v{x}, v{q}, v{q+2}')

def load_mod4(a, dst, which, RO, tmp, add1=False):
    a(f'buffer_load_dwordx2 {vr(tmp,2)}, v{RO}, s[{WS}:{WS+3}], 0 offen offset:{WS_MOD + which*1024} sc1') if WS_MOD + which * 1024 < 4096 else None
    if WS_MOD + which * 1024 >= 4096:
        a(f's_mov_b32 s21, {WS_MOD + which*1024}')
        a(f'buffer_load_dwordx2 {vr(tmp,2)}, v{RO}, s[{WS}:{WS+3}], s21 offen sc1')
    a('s_waitcnt vmcnt(0)')
    unpack(a, dst, dst + 1, tmp); unpack(a, dst + 2, dst + 3, tmp + 1)
    if add1:
        for k in range(4): a(f'v_add_f32 v{dst+k}, 1.0, v{dst+k}')

def dense_rows_unit(a, st, srd_, s_row0, row0, vD, vT, kind, regf, SO, SM, tmp):
    def issue(lds):
        a(f's_lshl_b32 s{SO}, s{S_W}, 12'); a(f's_add_u32 s{SO}, s{SO}, s{s_row0}'); a(f's_add_u32 s{SO}, s{SO}, {row0*1024}')
        dma4(a, vD, srd_, SO, 1024, lds, SM)
    def read(lds):
        for m in range(8):
            a(f'v_xor_b32 v{tmp}, {m*32}, v{vT}')
            if lds: a(f'v_add_u32 v{tmp}, {lds}, v{tmp}')
            a(f'ds_read_b64_tr_b16 {kind}[{regf(m)}:{regf(m)+1}], v{tmp}')
    st.add(issue, read)

def dense_rows_addrs(a, ln, g, rp, cp, vD, vT, t1, t2):
    a(f's_and_b32 s21, s{S_W}, 1'); a('s_lshl_b32 s21, s21, 3')
    for i in range(4):
        a(f'v_xor_b32 v{t1}, {2*i}, v{ln}'); a(f'v_xor_b32 v{t1}, s21, v{t1}'); a(f'v_lshlrev_b32 v{vD[i]}, 4, v{t1}')
    a(f'v_lshl_add_u32 v{t1}, v{g}, 2, v{rp}')
    a(f'v_and_b32 v{t2}, 7, v{t1}'); a(f'v_lshlrev_b32 v{t2}, 5, v{t2}')
    a(f'v_lshl_add_u32 v{t2}, v{t1}, 10, v{t2}')
    a(f'v_lshl_add_u32 v{t2}, v{cp}, 3, v{t2}')
    a(f's_lshl_b32 s21, s{S_W}, 8'); a(f'v_add_u32 v{vT}, s21, v{t2}')

def gen_att(a, fail='L_fail', done='L_done'):
    a.comment('================= ATT role: head s4, segments of parity xcc-4 =================')
    L_MEM, L_KC, L_VC, L_OX, L_LN, L_ST = 0, 0x2000, 0x3000, 0x4000, 0x6000, 0x8000
    L16, IDX, TR, KW = 0, 1, 2, 3
    HALF, ONES, OWA, PSA, RO, CKA, VMA, RLA = 4, 6, 10, 11, 12, 13, 14, 15
    GA, CB1, SB, SEL = 16, 20, 24, 28
    QF, KX, VX = 32, 48, 80
    X0, X1, E, PX, LL, O, MA, AK, AV = 96, 100, 104, 112, 116, 48, 64, 104, 120
    KMF, VM, Y, PM, OF = 64, 80, 108, 112, 64
    T0, T1, SP, SO, SM, SEG, SQ, SMEM, SPART, SPAR, SFL, SCS, SLIM, SSENT, SRED, SROW, SNB, SM0 = range(20, 38)
    MK = 40
    a(f's_load_dwordx4 s[60:63], s[0:1], {KA["Wk"]}')
    a(f's_load_dwordx2 s[64:65], s[0:1], {KA["Wo"]}')
    a(f's_load_dwordx2 s[66:67], s[0:1], {KA["x"]}')
    ln, g, c, rp, cp = 100, 101, 102, 103, 104
    lane_parts(a, ln, g, c, rp, cp); a(f'v_lshlrev_b32 v{L16}, 4, v{ln}')
    t1, t2, t3 = 105, 106, 107
    DA, TA, DO, TO, TMPV = 108, 112, 114, 118, 119
    for aa in range(4):
        a(f'v_and_b32 v{t1}, 1, v{g}'); a(f'v_or_b32 v{t1}, {aa<<1}, v{t1}'); a(f'v_lshlrev_b32 v{t1}, 1, v{t1}')
        a(f'v_xor_b32 v{t1}, v{t1}, v{c}'); a(f'v_lshlrev_b32 v{t1}, 4, v{t1}'); a(f'v_lshl_add_u32 v{DA+aa}, v{g}, 13, v{t1}')
    a(f'v_lshrrev_b32 v{t1}, 1, v{g}'); a(f'v_lshlrev_b32 v{t1}, 4, v{t1}'); a(f'v_lshrrev_b32 v{t2}, 1, v{rp}')
    a(f'v_lshl_add_u32 v{t1}, v{t2}, 3, v{t1}'); a(f'v_and_b32 v{t3}, 1, v{g}'); a(f'v_lshl_add_u32 v{t1}, v{t3}, 2, v{t1}')
    a(f'v_and_b32 v{TMPV}, 1, v{rp}'); a(f'v_add_u32 v{t1}, v{t1}, v{TMPV}')
    a(f'v_lshl_add_u32 v{TMPV}, v{t3}, 1, v{TMPV}'); a(f'v_lshl_add_u32 v{TMPV}, v{t2}, 2, v{TMPV}')
    a(f's_lshl_b32 s{T0}, s{S_W}, 1'); a(f'v_xor_b32 v{TMPV}, s{T0}, v{TMPV}'); a(f'v_lshlrev_b32 v{TMPV}, 5, v{TMPV}')
    a(f'v_lshl_add_u32 v{TMPV}, v{t1}, 8, v{TMPV}'); a(f'v_lshl_add_u32 v{TA}, v{cp}, 3, v{TMPV}'); a(f'v_xor_b32 v{TA+1}, 32, v{TA}')
    dense_rows_addrs(a, ln, g, rp, cp, [DO + i for i in range(4)], TO, t1, t2)
    a(f'v_and_b32 v{t1}, 8, v{ln}'); a(f'v_cmp_eq_u32 vcc, 0, v{t1}'); a(f'v_mov_b32 v{t2}, 0xeeeeeeee'); a(f'v_mov_b32 v{t3}, 0x44444444')
    a(f'v_cndmask_b32 v{IDX}, v{t2}, v{t3}, vcc')
    a(f'v_xor_b32 v{t2}, v{g}, v{rp}'); a(f'v_lshlrev_b32 v{t1}, 5, v{c}'); a(f'v_lshl_add_u32 v{t1}, v{t2}, 3, v{t1}')
    a(f's_lshl_b32 s{T0}, s{S_W}, 10'); a(f's_add_u32 s{T1}, s{T0}, {L_KC}'); a(f'v_add_u32 v{KW}, s{T1}, v{t1}')
    a(f'v_lshl_add_u32 v{t1}, v{g}, 2, v{rp}'); a(f'v_xor_b32 v{t2}, v{cp}, v{g}'); a(f'v_lshlrev_b32 v{t2}, 3, v{t2}'); a(f'v_lshl_add_u32 v{TR}, v{t1}, 5, v{t2}')
    for k in range(2): a(f'v_mov_b32 v{HALF+k}, 0x3f003f00')
    for k in range(4): a(f'v_mov_b32 v{ONES+k}, 0x3f803f80')
    a(f's_and_b32 s{T0}, s{S_W}, 1'); a(f's_lshl_b32 s{T0}, s{T0}, 12'); a(f's_lshr_b32 s{T1}, s{S_W}, 1'); a(f's_lshl_b32 s{T1}, s{T1}, 11')
    a(f's_add_u32 s{T0}, s{T0}, s{T1}'); a(f's_add_u32 s{T0}, s{T0}, {L_OX}'); a(f'v_add_u32 v{OWA}, s{T0}, v{L16}')
    a(f's_add_u32 s{T1}, s{T1}, {L_VC}'); a(f'v_add_u32 v{VMA}, s{T1}, v{L16}')
    a(f's_lshl_b32 s{SM0}, s{S_W}, 11'); a(f'v_add_u32 v{CKA}, s{SM0}, v{L16}')
    row_addrs(a, g, c, PSA, RLA, RO, t1)
    make_selector(a, ln, SEL, t1, t2, t3)
    a(f's_and_b32 s{T0}, s{S_W}, 1')
    for r in range(4):
        a(f'v_lshl_add_u32 v{t1}, v{g}, 2, {r}'); a(f'v_cmp_le_u32 vcc, v{t1}, v{c}')
        a(f's_cmp_eq_u32 s{T0}, 0')
        a(f's_cselect_b64 s[{MK+2*r}:{MK+2*r+1}], vcc, -1')
        a(f's_cselect_b64 s[{MK+8+2*r}:{MK+9+2*r}], 0, vcc')
    load_mod4(a, GA, 2, RO, 32); load_mod4(a, SB, 3, RO, 32); load_mod4(a, CB1, 4, RO, 32, add1=True)
    a(f's_sub_u32 s{SEG}, s{S_X}, 4')
    a(f's_lshl_b32 s{SPART}, s{SEG}, 21'); a(f's_add_u32 s{SPART}, s{SPART}, {WS_APART:#x}')
    ring_init(a, L16, SPART, 32, SO)
    a('s_waitcnt lgkmcnt(0)')
    st = Stager(a, L_ST, 8)
    curp = [None]
    def use(p):
        if curp[0] != p: srd(a, TS, p, p + 1, 4 << 20); curp[0] = p
    for mi, p in enumerate((60, 62)):
        for kk in range(8):
            def issue(lds, p=p, kk=kk):
                use(p)
                a(f's_lshl_b32 s{SO}, s{S_W}, 17'); a(f's_lshl_b32 s{T0}, s{S_R}, 8'); a(f's_add_u32 s{SO}, s{SO}, s{T0}'); a(f's_add_u32 s{SO}, s{SO}, {kk*64*8192:#x}')
                dma4(a, [DA + i for i in range(4)], TS, SO, 4 * 8192, lds, SM)
            def read(lds, mi=mi, kk=kk):
                for u in range(2):
                    a(f'v_add_u32 v{TMPV}, {lds}, v{TA+u}')
                    for hf in range(2):
                        for x in range(2):
                            b = mi * 128 + (kk * 2 + u) * 8 + hf * 4 + x * 2
                            a(f'ds_read_b64_tr_b16 a[{b}:{b+1}], v{TMPV} offset:{hf*8192 + x*512}')
            st.add(issue, read)
    a(f's_lshl_b32 s{SROW}, s{S_R}, 17')
    for t in range(4):
        for x in range(2):
            n0 = len(st.units)
            dense_rows_unit(a, st, TS, SROW, 32 * t + 16 * x, [DO + i for i in range(4)], TO, 'v', lambda m, t=t, x=x: 128 + (m * 4 + t) * 4 + 2 * x, SO, SM, TMPV)
            i0, r0 = st.units[n0]
            st.units[n0] = ((lambda lds, i0=i0: (use(64), i0(lds))), r0)
    vm = VmTrack(); vm.add('init')
    def mid(i, vm):
        if i == 0:
            a(f's_lshl_b32 s{T0}, s{S_X}, 2'); a(f's_add_u32 s{T0}, s{T0}, {DBG_GRP}')
            arrive(a, f's{T0}', 32)
    st.run(vm, mid)
    a(f's_lshl_b32 s{T0}, s{S_X}, 2'); a(f's_add_u32 s{T0}, s{T0}, {DBG_GRP}')
    wait_counter(a, f's{T0}', 32, 32, SP, fail)
    wait_counter(a, DBG_LN1, N_LN1, 32, SP, fail)
    srd(a, TS, 66, 67, 2 << 20)
    a(f's_mov_b32 s{SCS}, {f32bits(SCALE_LOG2E):#x}'); a(f's_mov_b32 s{SLIM}, {f32bits(2.0**60):#x}'); a(f's_mov_b32 s{SSENT}, {SENT:#x}')
    a(f's_mov_b32 s{SNB}, {f32bits(-1e30):#x}')
    a(f's_lshl_b32 s{SFL}, s{S_R}, 7'); a(f's_add_u32 s{SFL}, s{SFL}, {WS_FLAG:#x}')
    Lp = a.newlabel('L_at'); Lfb = a.newlabel('L_atfb'); Lfr = a.newlabel('L_atfr')
    ex = lambda d, s_: a(f'v_exp_f32 v{d}, v{s_}')
    def smfa(acc, A, B): a(f'v_smfmac_f32_16x16x64_bf16 {vr(acc,4)}, {vr(A,4)}, a[{B}:{B+7}], v{IDX}')
    def vload():
        a(f's_lshr_b32 s{T0}, s{S_W}, 1'); a(f's_lshl_b32 s{T0}, s{T0}, 12'); a(f's_add_u32 s{T0}, s{T0}, s{SQ}'); a(f's_add_u32 s{T0}, s{T0}, 16384')
        for j in range(4): a(f'buffer_load_dwordx4 {vr(VX+4*j,4)}, v{L16}, s[{WS}:{WS+3}], s{T0} offen offset:{1024*j} sc1')
    a.label(Lp)
    Lf = a.newlabel('L_atf')
    a(f's_mov_b32 s{SP}, 0')
    a.label(Lf)
    a(f'v_mov_b32 v{E}, -1')
    a('s_mov_b64 exec, 7'); a(f'buffer_load_dword v{E}, v{L16}, s[{WS}:{WS+3}], s{SFL} offen sc1'); a('s_mov_b64 exec, -1')
    spin(a, SP, fail)
    a('s_waitcnt vmcnt(0)')
    a(f'v_cmp_ge_u32 vcc, s{SEG}, v{E}')
    a(f's_cbranch_vccnz {Lf}')
    a(f's_lshl_b32 s{SQ}, s{S_R}, 21'); a(f's_lshl_b32 s{T0}, s{SEG}, 15'); a(f's_add_u32 s{SQ}, s{SQ}, s{T0}'); a(f's_add_u32 s{SQ}, s{SQ}, {WS_QKV:#x}')
    a(f's_and_b32 s{T0}, s{S_W}, 1'); a(f's_lshl_b32 s{T0}, s{T0}, 12'); a(f's_add_u32 s{T0}, s{T0}, s{SQ}')
    for t in range(4): a(f'buffer_load_dwordx4 {vr(QF+4*t,4)}, v{L16}, s[{WS}:{WS+3}], s{T0} offen offset:{1024*t} sc1')
    a(f's_add_u32 s{T0}, s{SQ}, 8192'); a(f's_add_u32 s{T1}, s{SQ}, 12288')
    for x in range(8): a(f'buffer_load_dwordx4 {vr(KX+4*x,4)}, v{L16}, s[{WS}:{WS+3}], s{T0 if x < 4 else T1} offen offset:{1024*(x&3)} sc1')
    vload()
    XR = 124
    a(f's_lshl_b32 s{SROW}, s{SEG}, 5'); a(f's_add_u32 s{SROW}, s{SROW}, s{S_R}'); a(f's_lshl_b32 s{SROW}, s{SROW}, 10')
    a(f's_lshl_b32 s{SMEM}, s{SEG}, 13'); a(f's_add_u32 s{SMEM}, s{SMEM}, s{SM0}'); a(f's_add_u32 s{SMEM}, s{SMEM}, {WS_MEMG:#x}')
    a(f's_bfe_u32 s{SPAR}, s{SEG}, 0x10002')
    a(f's_bfe_u32 s{T0}, s{SEG}, 0x10001'); a(f's_lshl_b32 s{T0}, s{T0}, 20'); a(f's_add_u32 s{SRED}, s{T0}, s{SPART}')
    a('s_waitcnt vmcnt(8)')
    for t in range(4): mf32(a, X0, KX + 4 * t, QF + 4 * t, '0' if t == 0 else X0)
    a('s_waitcnt vmcnt(4)')
    for t in range(4): mf32(a, X1, KX + 16 + 4 * t, QF + 4 * t, '0' if t == 0 else X1)
    for r in range(8):
        ex(E + r, X0 + r)
    for r in range(8): a(f'v_cndmask_b32 v{E+r}, 0, v{E+r}, s[{MK+2*r}:{MK+2*r+1}]')
    for r in range(4): cvt(a, PX + r, E + 2 * r, E + 2 * r + 1)
    a('s_waitcnt vmcnt(0)')
    mf32(a, LL, ONES, PX, '0')
    for j in range(4): mf32(a, O + 4 * j, VX + 4 * j, PX, '0')
    for k in range(0, 8, 2): a(f'v_mov_b64 {vr(AK+k,2)}, 0'); a(f'v_mov_b64 {vr(AV+k,2)}, 0')
    Lq = a.newlabel('L_atq'); Lqok = a.newlabel('L_atqk')
    a(f's_mov_b32 m0, s{SM0}'); a(f's_mov_b32 s{SP}, 0')
    a.label(Lq)
    a(f'buffer_load_dwordx4 v{L16}, s[{WS}:{WS+3}], s{SMEM} offen sc1 lds')
    a(f'buffer_load_dwordx4 v{L16}, s[{WS}:{WS+3}], s{SMEM} offen offset:1024 sc1 lds')
    spin(a, SP, fail)
    a('s_waitcnt vmcnt(0)')
    a(f'ds_read2st64_b32 {vr(PX,2)}, v{CKA} offset0:0 offset1:4')
    a('s_waitcnt lgkmcnt(0)')
    a(f'v_cmp_eq_u32 vcc, s{SSENT}, v{PX}'); a(f'v_cmp_eq_u32 s[{T0}:{T1}], s{SSENT}, v{PX+1}'); a(f's_or_b64 vcc, vcc, s[{T0}:{T1}]')
    a(f's_cbranch_vccnz {Lq}')
    a('s_barrier')
    for kk in range(4): a(f'ds_read_b128 {vr(MA+4*kk,4)}, v{L16} offset:{L_MEM + kk*1024}')
    for kk in range(8):
        a(f's_waitcnt lgkmcnt({min(3, 7-kk)})')
        smfa(AK, MA + 4 * kk, (kk * 2) * 8)
        if kk < 4: a(f'ds_read_b128 {vr(MA+16+4*kk,4)}, v{L16} offset:{L_MEM + (kk+4)*1024}')
        smfa(AK + 4, MA + 4 * kk, (kk * 2 + 1) * 8)
    for gi in range(16):
        smfa(AV + 4 * (gi & 1), MA + 4 * (gi >> 1), 128 + gi * 8)
        if gi == 2:
            for r in range(4): cvt(a, AK + r, AK + 2 * r, AK + 2 * r + 1)
            a(f'ds_write_b64 v{KW}, {vr(AK,2)}'); a(f'ds_write_b64 v{KW}, {vr(AK+2,2)} offset:512')
    for r in range(4): cvt(a, AV + r, AV + 2 * r, AV + 2 * r + 1)
    a(f's_lshl_b32 s{T0}, s{S_W}, 10'); a(f'v_add_u32 v{PX}, s{T0}, v{L16}')
    a(f'ds_write_b128 v{PX}, {vr(AV,4)} offset:{L_VC}')
    a(f'buffer_load_dwordx2 {vr(XR,2)}, v{RO}, s[{TS}:{TS+3}], s{SROW} offen')
    a('s_waitcnt lgkmcnt(0)'); a('s_barrier')
    for t in range(4):
        for x in range(2): a(f'ds_read_b64_tr_b16 {vr(KMF+4*t+2*x,2)}, v{TR} offset:{L_KC + (32*t+16*x)*32}')
    a(f'ds_read_b128 {vr(VM,4)}, v{VMA}'); a(f'ds_read_b128 {vr(VM+4,4)}, v{VMA} offset:1024')
    for t in range(4):
        a(f's_waitcnt lgkmcnt({8-2*t})')
        mf32(a, Y, KMF + 4 * t, QF + 4 * t, '0' if t == 0 else Y)
    a(sw32(Y, Y + 2)); a(sw32(Y + 1, Y + 3))
    a(f'v_add_f32 v{Y}, v{Y}, v{Y+2}'); a(f'v_add_f32 v{Y+1}, v{Y+1}, v{Y+3}')
    a(f'v_mul_f32 v{Y}, s{SCS}, v{Y}'); a(f'v_mul_f32 v{Y+1}, s{SCS}, v{Y+1}')
    ex(Y + 2, Y); ex(Y + 3, Y + 1)
    cvt(a, PM, Y + 2, Y + 3); a(f'v_mov_b32 v{PM+1}, v{PM}'); a(sw32(PM, PM + 1))
    a('s_waitcnt lgkmcnt(0)')
    def pvm():
        mf16(a, LL, HALF, PM, LL)
        for j in range(4): mf16(a, O + 4 * j, VM + 2 * j, PM, O + 4 * j)
    pvm()
    RL, TT = PM + 2, PM + 3
    a(f'v_rcp_f32 v{RL}, v{LL}'); a(f'v_max_f32 v{TT}, v{LL}, v{RL}'); a(f'v_cmp_nge_f32 vcc, s{SLIM}, v{TT}')
    a(f's_cbranch_vccnz {Lfb}')
    a.label(Lfr)
    for k in range(16): a(f'v_mul_f32 v{O+k}, v{O+k}, v{RL}')
    for k in range(8): cvt(a, O + k, O + 2 * k, O + 2 * k + 1)
    a(f'ds_write_b128 v{OWA}, {vr(O,4)}'); a(f'ds_write_b128 v{OWA}, {vr(O+4,4)} offset:1024')
    a(f's_lshl_b32 s{T0}, s{S_R}, 10'); a(f's_lshl_b32 s{T1}, s{S_W}, 8'); a(f's_add_u32 s{T0}, s{T0}, s{T1}'); a(f's_add_u32 s{T0}, s{T0}, s{SRED}')
    a(f's_add_u32 s{T1}, s{T0}, 0x80000')
    a('s_waitcnt lgkmcnt(0)'); a('s_barrier')
    for f in range(8): a(f'ds_read_b128 {vr(OF+4*f,4)}, v{L16} offset:{L_OX + f*1024}')
    def wo_out(k):
        A_ = 96 if (k & 1) == 0 else 32; P_ = 48 + 8 * (k & 1)
        for tt in range(2):
            for q in range(4): cvt(a, P_ + 4 * tt + q, A_ + 8 * tt + 2 * q, A_ + 8 * tt + 2 * q + 1)
            a(f'v_bfi_b32 v{P_+4*tt}, 1, s{SPAR}, v{P_+4*tt}')
            a(f'buffer_store_dwordx4 {vr(P_+4*tt,4)}, v{PSA}, s[{WS}:{WS+3}], s{T0 if tt == 0 else T1} offen offset:{64*k}')
    for k in range(4):
        A_ = 96 if (k & 1) == 0 else 32
        for t in range(4):
            if k == 0: a(f's_waitcnt lgkmcnt({3-t})' if t < 3 else 's_waitcnt lgkmcnt(0)') if False else None
            for tt in range(2):
                if k == 0 and t == 0 and tt == 0: a('s_waitcnt lgkmcnt(0)')
                for mm in range(2):
                    D = A_ + 8 * tt + 4 * mm
                    mf32(a, D, 128 + ((2 * k + mm) * 4 + t) * 4, OF + 4 * (tt * 4 + t), '0' if t == 0 else D)
            if k > 0 and t == 0: wo_out(k - 1)
    wo_out(3)
    a(f's_lshl_b32 s{T0}, s{S_R}, 15'); a(f's_lshl_b32 s{T1}, s{S_W}, 8'); a(f's_add_u32 s{T0}, s{T0}, s{T1}'); a(f's_add_u32 s{SRED}, s{SRED}, s{T0}')
    RD, TG = 96, 100
    reduce_rows(a, 8, 64, RD, TG, SEL, RLA, SRED, SPAR, T0, SP, fail)
    XF = 104
    unpack(a, XF, XF + 1, XR); unpack(a, XF + 2, XF + 3, XR + 1)
    cvt(a, RD, RD, RD + 1); cvt(a, RD + 1, RD + 2, RD + 3)
    unpack(a, RD + 2, RD + 3, RD + 1); unpack(a, RD, RD + 1, RD) if False else None
    a(f'v_and_b32 v{RD+1}, 0xffff0000, v{RD}'); a(f'v_lshlrev_b32 v{RD}, 16, v{RD}')
    for k in range(4): a(f'v_mul_f32 v{RD+k}, v{GA+k}, v{RD+k}')
    cvt(a, RD, RD, RD + 1); cvt(a, RD + 1, RD + 2, RD + 3)
    unpack(a, RD + 2, RD + 3, RD + 1); a(f'v_and_b32 v{RD+1}, 0xffff0000, v{RD}'); a(f'v_lshlrev_b32 v{RD}, 16, v{RD}')
    for k in range(4): a(f'v_add_f32 v{XF+k}, v{XF+k}, v{RD+k}')
    cvt(a, RD, XF, XF + 1); cvt(a, RD + 1, XF + 2, XF + 3)
    a(f's_add_u32 s{T0}, s{SROW}, {WS_X1:#x}')
    a(f'buffer_store_dwordx2 {vr(RD,2)}, v{RO}, s[{WS}:{WS+3}], s{T0} offen sc1')
    unpack(a, XF, XF + 1, RD); unpack(a, XF + 2, XF + 3, RD + 1)
    SUM, TQ = 108, 112
    a(f's_lshl_b32 s{T1}, s{S_W}, 2'); a(f'v_mov_b32 v{SUM+2}, s{T1}')
    a(f'v_add_f32 v{SUM}, v{XF}, v{XF+1}'); a(f'v_add_f32 v{SUM+1}, v{XF+2}, v{XF+3}'); a(f'v_add_f32 v{SUM}, v{SUM}, v{SUM+1}')
    wave_row_total(a, SUM, SUM + 1, SUM + 2, L_LN, TQ)
    a(f'v_mul_f32 v{SUM}, {f32bits(1/512):#x}, v{SUM}')
    for k in range(4): a(f'v_sub_f32 v{XF+k}, v{XF+k}, v{SUM}')
    a(f'v_mul_f32 v{SUM}, v{XF}, v{XF}')
    for k in range(1, 4): a(f'v_fmac_f32 v{SUM}, v{XF+k}, v{XF+k}')
    wave_row_total(a, SUM, SUM + 1, SUM + 2, L_LN + 16, TQ)
    a(f'v_mov_b32 v{SUM+1}, {f32bits(1e-5):#x}'); a(f'v_fmac_f32 v{SUM+1}, {f32bits(1/512):#x}, v{SUM}'); a(f'v_rsq_f32 v{SUM+1}, v{SUM+1}')
    for k in range(4): a(f'v_mul_f32 v{XF+k}, v{XF+k}, v{SUM+1}')
    for k in range(4): a(f'v_fma_f32 v{XF+k}, v{XF+k}, v{CB1+k}, v{SB+k}')
    cvt(a, RD + 2, XF, XF + 1); cvt(a, RD + 3, XF + 2, XF + 3)
    a(f's_add_u32 s{T0}, s{SROW}, {WS_H2:#x}')
    a(f'buffer_store_dwordx2 {vr(RD+2,2)}, v{RO}, s[{WS}:{WS+3}], s{T0} offen sc1')
    a(f's_add_u32 s{SEG}, s{SEG}, 2')
    a(f's_cmp_lt_u32 s{SEG}, 64')
    a(f's_cbranch_scc1 {Lp}')
    a(f's_branch {done}')
    a.label(Lfb)
    a.fence(16)
    VM_SAVE = 88
    a('s_waitcnt vmcnt(0)')
    for k in range(8): a(f'v_mov_b32 v{64+k}, v{VM+k}')
    vload()
    for r in range(8): a(f'v_mov_b32 v{TT}, s{SNB}'); a(f'v_cndmask_b32 v{X0+r}, v{TT}, v{X0+r}, s[{MK+2*r}:{MK+2*r+1}]')
    a(f'v_max3_f32 v{RL}, v{X0}, v{X0+1}, v{X0+2}'); a(f'v_max3_f32 v{RL}, v{RL}, v{X0+3}, v{X1}')
    a(f'v_max3_f32 v{RL}, v{RL}, v{X1+1}, v{X1+2}'); a(f'v_max3_f32 v{RL}, v{RL}, v{X1+3}, v{Y}'); a(f'v_max_f32 v{RL}, v{RL}, v{Y+1}')
    a(f'v_mov_b32 v{TT}, v{RL}'); a(sw32(RL, TT)); a(f'v_max_f32 v{RL}, v{RL}, v{TT}')
    a(f'v_mov_b32 v{TT}, v{RL}'); a(sw16(RL, TT)); a(f'v_max_f32 v{RL}, v{RL}, v{TT}')
    for r in range(8): a(f'v_sub_f32 v{X0+r}, v{X0+r}, v{RL}'); ex(X0 + r, X0 + r)
    for r in range(8): a(f'v_cndmask_b32 v{X0+r}, 0, v{X0+r}, s[{MK+2*r}:{MK+2*r+1}]')
    for r in range(4): cvt(a, 72 + r, X0 + 2 * r, X0 + 2 * r + 1)
    for r in range(2): a(f'v_sub_f32 v{Y+2+r}, v{Y+r}, v{RL}'); ex(Y + 2 + r, Y + 2 + r)
    cvt(a, PM, Y + 2, Y + 3); a(f'v_mov_b32 v{PM+1}, v{PM}'); a(sw32(PM, PM + 1))
    a('s_waitcnt vmcnt(0)')
    mf32(a, LL, ONES, 72, '0')
    for j in range(4): mf32(a, O + 4 * j, VX + 4 * j, 72, '0')
    mf16(a, LL, HALF, PM, LL)
    for j in range(4): mf16(a, O + 4 * j, 64 + 2 * j, PM, O + 4 * j)
    a.fence(12)
    a(f'v_rcp_f32 v{RL}, v{LL}')
    a('s_nop 1')
    a(f's_branch {Lfr}')

def gen_ffn(a, fail='L_fail', done='L_done'):
    a.comment('================= FFN role: hidden slice / token s4, segments of parity xcc-6 =================')
    L_H, L_FX, L_ST = 0, 0x8000, 0xA000
    L16, HG, FW, PSA, RO, RLA, CKA = 0, 1, 2, 3, 4, 5, 6
    GB, SEL = 8, 12
    T0, T1, SP, SO, SM, SEG, SPART, SPAR, SSENT, SRED, SROW, SNL, SH = range(20, 33)
    a(f's_load_dwordx4 s[60:63], s[0:1], {KA["w1"]}')
    a(f's_load_dwordx2 s[64:65], s[0:1], {KA["out"]}')
    ln, g, c, rp, cp = 100, 101, 102, 103, 104
    lane_parts(a, ln, g, c, rp, cp); a(f'v_lshlrev_b32 v{L16}, 4, v{ln}')
    t1, t2, t3 = 105, 106, 107
    D1, T1A, DO, TO, TMPV = 108, 110, 114, 118, 119
    a(f's_mov_b32 s{T0}, 3584')
    for hv in range(2):
        a(f'v_bfe_u32 v{t1}, v{ln}, 4, 1'); a(f'v_or_b32 v{t1}, {hv<<1}, v{t1}'); a(f'v_lshlrev_b32 v{t1}, 1, v{t1}')
        a(f'v_and_b32 v{t2}, 7, v{ln}'); a(f'v_xor_b32 v{t1}, v{t1}, v{t2}'); a(f'v_lshlrev_b32 v{t1}, 4, v{t1}')
        a(f'v_lshrrev_b32 v{t2}, 3, v{ln}'); a(f'v_mad_u32_u24 v{D1+hv}, v{t2}, s{T0}, v{t1}')
    a(f'v_lshl_add_u32 v{t1}, v{g}, 3, v{rp}'); a(f'v_lshrrev_b32 v{t2}, 1, v{rp}'); a(f'v_and_b32 v{t3}, 1, v{g}'); a(f'v_lshl_add_u32 v{t2}, v{t3}, 1, v{t2}')
    a(f'v_xor_b32 v{t2}, s{S_W}, v{t2}'); a(f'v_lshlrev_b32 v{t2}, 5, v{t2}'); a(f'v_lshl_add_u32 v{t2}, v{t1}, 7, v{t2}'); a(f'v_lshl_add_u32 v{T1A}, v{cp}, 3, v{t2}')
    dense_rows_addrs(a, ln, g, rp, cp, [DO + i for i in range(4)], TO, t1, t2)
    a(f'v_lshlrev_b32 v{t1}, 4, v{g}'); a(f'v_lshl_add_u32 v{HG}, v{c}, 10, v{t1}')
    a(f's_lshr_b32 s{T0}, s{S_W}, 1'); a(f's_lshl_b32 s{T0}, s{T0}, 10'); a(f's_and_b32 s{T1}, s{S_W}, 1'); a(f's_lshl_b32 s{T1}, s{T1}, 3')
    a(f's_add_u32 s{T0}, s{T0}, s{T1}'); a(f's_add_u32 s{T0}, s{T0}, {L_FX}'); a(f'v_add_u32 v{FW}, s{T0}, v{L16}')
    a(f's_lshl_b32 s{T0}, s{S_W}, 12'); a(f'v_add_u32 v{CKA}, s{T0}, v{L16}')
    row_addrs(a, g, c, PSA, RLA, RO, t1)
    make_selector(a, ln, SEL, t1, t2, t3)
    load_mod4(a, GB, 5, RO, 32)
    a(f's_sub_u32 s{SEG}, s{S_X}, 6')
    a(f's_lshl_b32 s{SPART}, s{SEG}, 21'); a(f's_add_u32 s{SPART}, s{SPART}, {WS_FPART:#x}')
    ring_init(a, L16, SPART, 32, SO)
    a('s_waitcnt vmcnt(0) lgkmcnt(0)'); a('s_barrier')
    a(f's_lshl_b32 s{T0}, s{S_X}, 2'); a(f's_add_u32 s{T0}, s{T0}, {DBG_GRP}')
    arrive(a, f's{T0}', 32)
    Lnw = a.newlabel('L_fnw')
    a(f's_cmp_ge_u32 s{S_R}, 28'); a(f's_cbranch_scc1 {Lnw}')
    st = Stager(a, L_ST, 7)
    for un in range(4):
        def issue(lds, un=un):
            if un == 0: srd(a, TS, 60, 61, 512 * 3584)
            a(f's_mul_i32 s{SO}, s{S_W}, {32*3584}'); a(f's_lshl_b32 s{T0}, s{S_R}, 7'); a(f's_add_u32 s{SO}, s{SO}, s{T0}'); a(f's_add_u32 s{SO}, s{SO}, {un*128*3584}')
            dma4(a, (D1, D1 + 1, D1, D1 + 1), TS, SO, 8 * 3584, lds, SM)
        def read(lds, un=un):
            a(f'v_add_u32 v{TMPV}, {lds}, v{T1A}')
            for k4 in range(4):
                for x in range(2):
                    b = (un * 4 + k4) * 4 + 2 * x
                    a(f'ds_read_b64_tr_b16 a[{b}:{b+1}], v{TMPV} offset:{(32*k4 + 4*x)*128}')
        st.add(issue, read)
    a(f's_lshl_b32 s{SROW}, s{S_R}, 16')
    for t in range(2):
        for x in range(2):
            n0 = len(st.units)
            dense_rows_unit(a, st, TS, SROW, 32 * t + 16 * x, [DO + i for i in range(4)], TO, 'a', lambda m, t=t, x=x: 64 + (m * 2 + t) * 4 + 2 * x, SO, SM, TMPV)
            if n0 == 4:
                i0, r0 = st.units[n0]
                st.units[n0] = ((lambda lds, i0=i0: (srd(a, TS, 62, 63, 1792 * 1024), i0(lds))), r0)
    vm = VmTrack(); vm.add('x')
    st.run(vm)
    a.label(Lnw)
    a(f's_lshl_b32 s{T0}, s{S_X}, 2'); a(f's_add_u32 s{T0}, s{T0}, {DBG_GRP}')
    wait_counter(a, f's{T0}', 32, 32, SP, fail)
    wait_counter(a, DBG_LN1, N_LN1, 32, SP, fail)
    srd(a, TS, 64, 65, 2 << 20)
    a(f's_mov_b32 s{SSENT}, {SENT:#x}'); a(f's_mov_b32 s{SNL}, {f32bits(-LOG2E):#x}')
    Lp = a.newlabel('L_ff'); Lred = a.newlabel('L_ffr')
    a.label(Lp)
    a(f's_lshl_b32 s{SROW}, s{SEG}, 5'); a(f's_add_u32 s{SROW}, s{SROW}, s{S_R}'); a(f's_lshl_b32 s{SROW}, s{SROW}, 10')
    a(f's_bfe_u32 s{SPAR}, s{SEG}, 0x10002')
    a(f's_bfe_u32 s{T0}, s{SEG}, 0x10001'); a(f's_lshl_b32 s{T0}, s{T0}, 20'); a(f's_add_u32 s{SRED}, s{T0}, s{SPART}')
    Lzero = a.newlabel('L_ffz')
    a(f's_cmp_ge_u32 s{S_R}, 28'); a(f's_cbranch_scc1 {Lzero}')
    Lq = a.newlabel('L_ffq')
    a(f's_lshl_b32 s{SH}, s{SEG}, 15'); a(f's_lshl_b32 s{T0}, s{S_W}, 8'); a(f's_add_u32 s{SH}, s{SH}, s{T0}'); a(f's_add_u32 s{SH}, s{SH}, {WS_H2:#x}')
    a(f's_mov_b32 s{SP}, 0')
    a.label(Lq)
    a(f's_lshl_b32 s{SM}, s{S_W}, 12'); a(f's_mov_b32 s{SO}, s{SH}')
    for tt in range(2):
        for i in range(4):
            a(f's_mov_b32 m0, s{SM}')
            a(f's_add_u32 s{SM}, s{SM}, {1024 if i < 3 else 16384 - 3072}')
            a(f'buffer_load_dwordx4 v{HG}, s[{WS}:{WS+3}], s{SO} offen sc1 lds')
            a(f's_add_u32 s{SO}, s{SO}, {64 if i < 3 else 16384 - 192}')
    spin(a, SP, fail)
    a('s_waitcnt vmcnt(0)')
    for tt in range(2):
        for i in range(2): a(f'ds_read2st64_b32 {vr(32+4*tt+2*i,2)}, v{CKA} offset0:{64*tt + 8*i} offset1:{64*tt + 8*i + 4}')
    a('s_waitcnt lgkmcnt(0)')
    a(f'v_cmp_eq_u32 vcc, s{SSENT}, v32')
    for k in range(1, 8):
        a(f'v_cmp_eq_u32 s[{T0}:{T1}], s{SSENT}, v{32+k}'); a(f's_or_b64 vcc, vcc, s[{T0}:{T1}]')
    a(f's_cbranch_vccnz {Lq}')
    a('s_barrier')
    HF, FA = 32, 96
    order = [(ks, tt) for ks in range(16) for tt in range(2)]
    def rd(i):
        ks, tt = order[i]
        a(f'ds_read_b128 {vr(HF + 4*(i % 16), 4)}, v{L16} offset:{L_H + (tt*16 + ks)*1024}')
    for i in range(6): rd(i)
    for i, (ks, tt) in enumerate(order):
        a(f's_waitcnt lgkmcnt({min(5, 31 - i)})')
        a(f'v_mfma_f32_16x16x32_bf16 {vr(FA+4*tt,4)}, a[{ks*4}:{ks*4+3}], {vr(HF + 4*(i % 16),4)}, {"0" if ks == 0 else vr(FA+4*tt,4)}')
        if i + 6 < 32: rd(i + 6)
    for k in range(8):
        rbf(a, FA + k, FA + k); silu(a, FA + k, 104 + (k & 1), SNL)
    for k in range(4): cvt(a, FA + k, FA + 2 * k, FA + 2 * k + 1)
    a(f'ds_write_b64 v{FW}, {vr(FA,2)}'); a(f'ds_write_b64 v{FW}, {vr(FA+2,2)} offset:2048')
    a(f's_lshl_b32 s{T0}, s{S_R}, 10'); a(f's_lshl_b32 s{T1}, s{S_W}, 8'); a(f's_add_u32 s{T0}, s{T0}, s{T1}'); a(f's_add_u32 s{T0}, s{T0}, s{SRED}')
    a(f's_add_u32 s{T1}, s{T0}, 0x80000')
    a('s_waitcnt lgkmcnt(0)'); a('s_barrier')
    FF = 32
    for f in range(4): a(f'ds_read_b128 {vr(FF+4*f,4)}, v{L16} offset:{L_FX + f*1024}')
    def out(k):
        A_ = 64 + 16 * (k & 1); P_ = 48 + 8 * (k & 1)
        for tt in range(2):
            for q in range(4): cvt(a, P_ + 4 * tt + q, A_ + 8 * tt + 2 * q, A_ + 8 * tt + 2 * q + 1)
            a(f'v_bfi_b32 v{P_+4*tt}, 1, s{SPAR}, v{P_+4*tt}')
            a(f'buffer_store_dwordx4 {vr(P_+4*tt,4)}, v{PSA}, s[{WS}:{WS+3}], s{T0 if tt == 0 else T1} offen offset:{64*k}')
    a('s_waitcnt lgkmcnt(0)')
    for k in range(4):
        A_ = 64 + 16 * (k & 1)
        for t in range(2):
            for tt in range(2):
                for mm in range(2):
                    D = vr(A_ + 8 * tt + 4 * mm, 4); b = 64 + ((2 * k + mm) * 2 + t) * 4
                    a(f'v_mfma_f32_16x16x32_bf16 {D}, a[{b}:{b+3}], {vr(FF + 4*(tt*2+t),4)}, {"0" if t == 0 else D}')
            if k > 0 and t == 0: out(k - 1)
    out(3)
    a.label(Lred)
    a(f's_lshl_b32 s{T0}, s{S_R}, 15'); a(f's_lshl_b32 s{T1}, s{S_W}, 8'); a(f's_add_u32 s{T0}, s{T0}, s{T1}'); a(f's_add_u32 s{SRED}, s{SRED}, s{T0}')
    RD, TG, XR, XF = 96, 100, 102, 104
    reduce_rows(a, 8, 64, RD, TG, SEL, RLA, SRED, SPAR, T0, SP, fail)
    Lx = a.newlabel('L_ffx')
    a(f's_add_u32 s{T0}, s{SROW}, {WS_X1:#x}'); a(f's_mov_b32 s{SP}, 0')
    a.label(Lx)
    a(f'buffer_load_dwordx2 {vr(XR,2)}, v{RO}, s[{WS}:{WS+3}], s{T0} offen sc1')
    spin(a, SP, fail)
    a('s_waitcnt vmcnt(0)')
    a(f'v_cmp_eq_u32 vcc, s{SSENT}, v{XR}')
    a(f's_cbranch_vccnz {Lx}')
    unpack(a, XF, XF + 1, XR); unpack(a, XF + 2, XF + 3, XR + 1)
    cvt(a, RD, RD, RD + 1); cvt(a, RD + 1, RD + 2, RD + 3)
    unpack(a, RD + 2, RD + 3, RD + 1); a(f'v_and_b32 v{RD+1}, 0xffff0000, v{RD}'); a(f'v_lshlrev_b32 v{RD}, 16, v{RD}')
    for k in range(4): a(f'v_mul_f32 v{RD+k}, v{GB+k}, v{RD+k}')
    cvt(a, RD, RD, RD + 1); cvt(a, RD + 1, RD + 2, RD + 3)
    unpack(a, RD + 2, RD + 3, RD + 1); a(f'v_and_b32 v{RD+1}, 0xffff0000, v{RD}'); a(f'v_lshlrev_b32 v{RD}, 16, v{RD}')
    for k in range(4): a(f'v_add_f32 v{XF+k}, v{XF+k}, v{RD+k}')
    cvt(a, RD, XF, XF + 1); cvt(a, RD + 1, XF + 2, XF + 3)
    a(f'buffer_store_dwordx2 {vr(RD,2)}, v{RO}, s[{TS}:{TS+3}], s{SROW} offen')
    a(f's_add_u32 s{SEG}, s{SEG}, 2')
    a(f's_cmp_lt_u32 s{SEG}, 64')
    a(f's_cbranch_scc1 {Lp}')
    a(f's_branch {done}')
    a.label(Lzero)
    a(f's_lshl_b32 s{T0}, s{S_R}, 10'); a(f's_lshl_b32 s{T1}, s{S_W}, 8'); a(f's_add_u32 s{T0}, s{T0}, s{T1}'); a(f's_add_u32 s{T0}, s{T0}, s{SRED}')
    a(f's_add_u32 s{T1}, s{T0}, 0x80000')
    a(f'v_mov_b32 v48, s{SPAR}')
    for k in range(1, 4): a(f'v_mov_b32 v{48+k}, 0')
    for k in range(4):
        for tt in range(2): a(f'buffer_store_dwordx4 v[48:51], v{PSA}, s[{WS}:{WS+3}], s{T0 if tt == 0 else T1} offen offset:{64*k}')
    a(f's_branch {Lred}')
```

```python
import sys
from common import *
from chain import gen_chain
from roles import gen_front, gen_qkv, gen_att, gen_ffn
HDR = open('adaLN_cond__memory_aug_recurrent_mem_tr__dense_activation_silu__prompt.s.ref').read().split('; Override launch')[0]
def build(d1=70, d2=15, d3=0, d4=0, timing=False):
    a = Asm()
    if timing: a('s_memtime s[78:79]')
    prologue(a)
    a('s_cmp_eq_u32 s5, 0'); a('s_cbranch_scc1 L_role_chain')
    a('s_cmp_lt_u32 s5, 4'); a('s_cbranch_scc1 L_role_qkv')
    gen_front(a)
    a('s_cmp_lt_u32 s5, 6'); a('s_cbranch_scc1 L_role_att')
    gen_ffn(a)
    a.label('L_role_att'); gen_att(a)
    a.label('L_role_qkv'); gen_qkv(a)
    a.label('L_role_chain'); gen_chain(a, d1=d1, d2=d2, d3=d3, d4=d4, timing=timing)
    epilogue(a, timing)
    return HDR + header(NAME) + a.text() + footer(NAME), a
if __name__ == '__main__':
    txt, a = build()
    open('adaLN_cond__memory_aug_recurrent_mem_tr__dense_activation_silu__prompt.s', 'w').write(txt)
    print('lines', len(a.lines), 'bytes', len(txt))
```

```python
from common import *

L_MEMX = 0; L_QX = 0x2000; L_SEL = 0x3000; L_KXCH = 0x4000; L_OX = 0x5000; L_KX = 0x6000; L_PX = 0x3800; L_PM = 0x3C00; L_FB = 0; L_WL = 0x8000
L16, IDX, QW, TR, KW, OW, PW, WL, SS, PS = range(10)
HALF = 10; ONES = 12; VX = 16; AQ = 24; K0 = 32; K1 = 36; V1 = 40; V0 = 44; MA = 48; R0 = 80; R1 = 96; R2 = 112
AKt = (K0, K1); AVt = (V0, V1); FLG = K0
def WK(u, kk): return ar((kk * 2 + u) * 8, 8)
QL = (0, 2, 4); QR = (1, 3, 5, 6, 7)
def WQ(u, kk):
    if kk in QR: return ar(128 + (QR.index(kk) * 2 + u) * 8, 8)
    return vr(R0 + (QL.index(kk) * 2 + u) * 8, 8)
def WV(u, kk):
    if kk < 7: return vr(144 + (kk * 2 + u) * 8, 8)
    return vr(R2 + u * 8, 8)
WO_SLOT = {(0, 2): R0, (0, 3): R0 + 8, (1, 2): R1, (1, 3): R1 + 8, (2, 2): MA + 16, (2, 3): MA + 24, (3, 2): AQ, (3, 3): K1}
def WOreg(P, t):
    if t < 2:
        i = P * 2 + t
        return ('a', 208 + i * 8) if i < 6 else ('v', 128 + (i - 6) * 8)
    return ('v', WO_SLOT[(P, t)])
def WO(P, t):
    k, b = WOreg(P, t)
    return ar(b, 8) if k == 'a' else vr(b, 8)
S_W, S_H = 3, 4
WS, TS, DB = 8, 12, 16
S_STEP, S_PST, S_PST2, S_PLD, S_PAR, S_MST, S_MLD, S_MRS, S_KV, S_KM, S_KMP, S_KXL, S_NEED, S_SPIN, S_T0, S_T1, S_SENT, S_LIM, S_CS, S_FLG, S_KXR, S_M0M = range(20, 42)
S_PM = 74
S_W2K = 58
S_BM = 72
P_MEM0, P_WQ, P_WK, P_WV, P_WO = 60, 62, 64, 66, 68

def smf(a, acc, A, B):
    a(f'v_smfmac_f32_16x16x64_bf16 {vr(acc,4)}, {vr(A,4)}, {B}, v{IDX}')
def mf32(a, D, A, B, C):
    a(f'v_mfma_f32_16x16x32_bf16 {vr(D,4)}, {vr(A,4)}, {vr(B,4)}, {C if isinstance(C,str) else vr(C,4)}')
def mf16(a, D, A, B, C):
    a(f'v_mfma_f32_16x16x16_bf16 {vr(D,4)}, {vr(A,2)}, {vr(B,2)}, {C if isinstance(C,str) else vr(C,4)}')
def cvt(a, d, x, y): a(f'v_cvt_pk_bf16_f32 v{d}, v{x}, v{y}')

STAMPS = None
CH_DEPTH = 8
IPE = [20, 26]
def stamp(a, diag, k):
    if not diag: return
    if STAMPS is not None and k not in STAMPS: return
    a(f's_memtime s[{44+2*k}:{45+2*k}]')

def gen_chain(a, diag=False, fail='L_fail', done='L_done', standalone=False, d1=0, d2=0, d3=0, d4=0, opt=(), timing=False, d1a=20, dA=110, dB=160, nA=2, gB=16, nS=1, d2w=10, pre=False):
    vm = VmTrack()
    a(f's_load_dwordx2 s[{P_MEM0}:{P_MEM0+1}], s[0:1], {KA["mem0"]}')
    a(f's_load_dwordx4 s[{P_WK}:{P_WK+3}], s[0:1], {KA["Wk"]}')
    a(f's_load_dwordx2 s[{P_WQ}:{P_WQ+1}], s[0:1], {KA["Wq"]}')
    a(f's_load_dwordx2 s[{P_WO}:{P_WO+1}], s[0:1], {KA["Wo"]}')
    ln = 20
    a(f'v_and_b32 v{ln}, 63, v0')
    a(f'v_lshlrev_b32 v{L16}, 4, v{ln}')
    g, c, t1, t2, t3 = 21, 22, 23, 24, 25
    a(f'v_lshrrev_b32 v{g}, 4, v{ln}')
    a(f'v_and_b32 v{c}, 15, v{ln}')
    DA = 30
    DO = 34
    TA = 38
    TO = 40
    TMP = 80
    for aa in range(4):
        a(f'v_and_b32 v{t1}, 1, v{g}')
        a(f'v_or_b32 v{t1}, {aa<<1}, v{t1}')
        a(f'v_lshlrev_b32 v{t1}, 1, v{t1}')
        a(f'v_xor_b32 v{t1}, v{t1}, v{c}')
        a(f'v_lshlrev_b32 v{t1}, 4, v{t1}')
        a(f'v_lshl_add_u32 v{DA+aa}, v{g}, 13, v{t1}')
    for k, sg in enumerate((0, 1, 8, 9)):
        a(f'v_xor_b32 v{t1}, {sg}, v{ln}')
        a(f'v_lshlrev_b32 v{DO+k}, 4, v{t1}')
    rp, cp = 26, 27
    a(f'v_lshrrev_b32 v{rp}, 2, v{c}')
    a(f'v_and_b32 v{cp}, 3, v{c}')
    a(f'v_lshrrev_b32 v{t1}, 1, v{g}')
    a(f'v_lshlrev_b32 v{t1}, 4, v{t1}')
    a(f'v_lshrrev_b32 v{t2}, 1, v{rp}')
    a(f'v_lshl_add_u32 v{t1}, v{t2}, 3, v{t1}')
    a(f'v_and_b32 v{t3}, 1, v{g}')
    a(f'v_lshl_add_u32 v{t1}, v{t3}, 2, v{t1}')
    a(f'v_and_b32 v28, 1, v{rp}')
    a(f'v_add_u32 v{t1}, v{t1}, v28')
    a(f'v_lshl_add_u32 v28, v{t3}, 1, v28')
    a(f'v_lshl_add_u32 v28, v{t2}, 2, v28')
    a(f's_lshl_b32 s{S_T0}, s{S_W}, 1')
    a(f'v_xor_b32 v28, s{S_T0}, v28')
    a(f'v_lshlrev_b32 v28, 5, v28')
    a(f'v_lshl_add_u32 v28, v{t1}, 8, v28')
    a(f'v_lshl_add_u32 v28, v{cp}, 3, v28')
    a(f'v_add_u32 v{TA}, {L_WL}, v28')
    a(f'v_xor_b32 v{TA+1}, 32, v{TA}')
    a(f'v_and_b32 v28, 1, v{rp}')
    a(f'v_lshl_add_u32 v{t1}, v{g}, 2, v28')
    a(f'v_lshl_add_u32 v28, v{t3}, 3, v28')
    a(f'v_lshlrev_b32 v29, 2, v{t2}')
    a(f'v_and_b32 v{t2}, 2, v{cp}')
    a(f'v_add_u32 v29, v29, v{t2}')
    a(f's_lshl_b32 s{S_T0}, s{S_W}, 4')
    a(f'v_add_u32 v29, s{S_T0}, v29')
    a(f'v_xor_b32 v29, v29, v28')
    a(f'v_lshlrev_b32 v29, 4, v29')
    a(f'v_lshl_add_u32 v29, v{t1}, 10, v29')
    a(f'v_and_b32 v{t2}, 1, v{cp}')
    a(f'v_lshl_add_u32 v29, v{t2}, 3, v29')
    a(f'v_add_u32 v{TO}, {L_WL}, v29')
    a(f'v_and_b32 v{t1}, 8, v{ln}')
    a(f'v_cmp_eq_u32 vcc, 0, v{t1}')
    a(f'v_mov_b32 v{t2}, 0xeeeeeeee')
    a(f'v_mov_b32 v{t3}, 0x44444444')
    a(f'v_cndmask_b32 v{IDX}, v{t2}, v{t3}, vcc')
    a(f'v_lshrrev_b32 v{t1}, 5, v{ln}')
    a(f'v_lshl_add_u32 v{t1}, v{t1}, 4, v{c}')
    a(f's_lshl_b32 s{S_T0}, s{S_W}, 10')
    a(f'v_lshlrev_b32 v{t1}, 5, v{t1}')
    a(f'v_xor_b32 v{t2}, v{g}, v{rp}')
    a(f'v_and_b32 v{t3}, 1, v{t2}')
    a(f'v_lshl_add_u32 v{t1}, v{t3}, 3, v{t1}')
    a(f's_add_u32 s{S_T1}, s{S_T0}, {L_QX}')
    a(f'v_add_u32 v{QW}, s{S_T1}, v{t1}')
    a(f'v_lshlrev_b32 v{t1}, 5, v{c}')
    a(f'v_lshl_add_u32 v{t1}, v{t2}, 3, v{t1}')
    a(f's_add_u32 s{S_T1}, s{S_T0}, {L_KXCH}')
    a(f'v_add_u32 v{KW}, s{S_T1}, v{t1}')
    a(f'v_lshl_add_u32 v{t1}, v{g}, 2, v{rp}')
    a(f'v_xor_b32 v{t2}, v{cp}, v{g}')
    a(f'v_lshlrev_b32 v{t2}, 3, v{t2}')
    a(f'v_lshl_add_u32 v{TR}, v{t1}, 5, v{t2}')
    a(f'v_lshrrev_b32 v{t2}, 1, v{g}')
    a(f'v_lshlrev_b32 v{t2}, 8, v{t2}')
    a(f'v_lshl_add_u32 v{t2}, v{c}, 4, v{t2}')
    a(f'v_and_b32 v{t3}, 1, v{g}')
    a(f'v_lshl_add_u32 v{t2}, v{t3}, 3, v{t2}')
    a(f's_add_u32 s{S_T1}, s{S_T0}, {L_OX}')
    a(f'v_add_u32 v{OW}, s{S_T1}, v{t2}')
    a(f's_lshl_b32 s{S_T1}, s{S_W}, 3'); a(f's_add_u32 s{S_T1}, s{S_T1}, {L_PX}'); a(f'v_add_u32 v{PW}, s{S_T1}, v{L16}')
    Lpw = a.newlabel('L_chpw')
    a(f's_cmp_lt_u32 s{S_W}, 2'); a(f's_cbranch_scc1 {Lpw}')
    a(f'v_lshlrev_b32 v{t1}, 8, v{t3}'); a(f'v_lshl_add_u32 v{t1}, v{c}, 4, v{t1}'); a(f'v_lshrrev_b32 v{t2}, 1, v{g}'); a(f'v_lshl_add_u32 v{t1}, v{t2}, 2, v{t1}')
    a(f's_and_b32 s{S_T1}, s{S_W}, 1'); a(f's_lshl_b32 s{S_T1}, s{S_T1}, 9'); a(f's_add_u32 s{S_T1}, s{S_T1}, {L_PM}'); a(f'v_add_u32 v{PW}, s{S_T1}, v{t1}')
    a.label(Lpw)
    a(f'v_and_b32 v{t1}, 7, v{ln}')
    a(f'v_lshlrev_b32 v{t1}, 4, v{t1}')
    a(f's_lshl_b32 s{S_T0}, s{S_W}, 12')
    a(f's_add_u32 s{S_T0}, s{S_T0}, {L_WL}')
    a(f'v_add_u32 v{WL}, s{S_T0}, v{L16}')
    a(f'v_lshl_add_u32 v{t1}, v{t3}, 7, v{t1}')
    a(f'v_lshrrev_b32 v{t2}, 5, v{ln}')
    a(f'v_bfe_u32 v{t3}, v{ln}, 3, 1')
    a(f'v_lshl_add_u32 v{t2}, v{t2}, 1, v{t3}')
    a(f's_lshl_b32 s{S_T0}, s{S_W}, 3')
    a(f'v_add_u32 v{t2}, s{S_T0}, v{t2}')
    a(f'v_lshl_add_u32 v{PS}, v{t2}, 13, v{t1}')
    a(f'v_lshrrev_b32 v{t1}, 1, v{g}')
    a(f'v_lshl_add_u32 v{t1}, v{t1}, 2, v{cp}')
    a(f'v_lshlrev_b32 v{t1}, 4, v{t1}')
    a(f'v_and_b32 v{t2}, 1, v{rp}')
    a(f'v_lshl_add_u32 v{t1}, v{t2}, 7, v{t1}')
    a(f'v_and_b32 v{t2}, 1, v{g}')
    a(f'v_lshl_add_u32 v{SS}, v{t2}, 3, v{t1}')
    for k in range(2): a(f'v_mov_b32 v{HALF+k}, 0x3f003f00')
    for k in range(4): a(f'v_mov_b32 v{ONES+k}, 0x3f803f80')
    a(f'v_and_b32 v{t1}, 7, v{ln}')
    a(f'v_and_b32 v{t2}, 1, v{ln}')
    a(f'v_lshlrev_b32 v{t2}, 4, v{t2}')
    a(f'v_mov_b32 v{t3}, 0x3f80')
    a(f'v_lshlrev_b32 v{t3}, v{t2}, v{t3}')
    a(f'v_lshrrev_b32 v{t1}, 1, v{t1}')
    for r in range(4):
        a(f'v_cmp_eq_u32 vcc, {r}, v{t1}')
        a(f'v_cndmask_b32 v{44+r}, 0, v{t3}, vcc')
    a(f'ds_write_b128 v{L16}, v[44:47] offset:{L_SEL}')
    M0V = 42
    a(f'v_and_b32 v{t1}, 7, v{ln}')
    a(f'v_lshlrev_b32 v{t1}, 10, v{t1}')
    a(f'v_lshl_add_u32 v{t1}, v{g}, 5, v{t1}')
    a(f'v_bfe_u32 v{t2}, v{ln}, 3, 1')
    a(f'v_lshl_add_u32 v{M0V}, v{t2}, 4, v{t1}')
    a(f's_mov_b32 s{S_SENT}, {SENT:#x}')
    a(f's_mov_b32 s{S_LIM}, {f32bits(2.0**60):#x}')
    a(f's_mov_b32 s{S_CS}, {f32bits(SCALE_LOG2E):#x}')
    a('s_waitcnt lgkmcnt(0)')

    tmark(a, 2)
    items = [('k', kk) for kk in range(8)] + [('q', kk) for kk in QR] + [('v', kk) for kk in range(7)] + \
            [('o', 0), ('o', 1), ('q', 0), ('q', 2), ('q', 4), ('v', 7), ('o', 2), ('o', 3)]
    units = []; u0 = 0
    for it in items:
        n = 2 if it[0] == 'o' else 1
        units.append((u0, n)); u0 += n
    ptr = {'q': P_WQ, 'k': P_WK, 'v': P_WV, 'o': P_WO}
    cur_srd = [None]
    S_A, S_B = 42, 43
    def issue(ii):
        m, kk = items[ii]; u, n = units[ii]
        if cur_srd[0] != m:
            srd(a, TS, ptr[m], ptr[m] + 1, 4 << 20); cur_srd[0] = m
        lds = L_WL + (u % 8) * 16384
        if m != 'o':
            a(f's_lshl_b32 s{S_A}, s{S_W}, 17')
            a(f's_lshl_b32 s{S_B}, s{S_H}, 8')
            a(f's_add_u32 s{S_A}, s{S_A}, s{S_B}')
            a(f's_add_u32 s{S_A}, s{S_A}, {kk*64*8192:#x}')
            a(f's_lshl_b32 s{S_B}, s{S_W}, 12')
            a(f's_add_u32 s{S_B}, s{S_B}, {lds}')
            for aa in range(4):
                a(f's_mov_b32 m0, s{S_B}')
                if aa < 3: a(f's_add_u32 s{S_B}, s{S_B}, 1024')
                a(f'buffer_load_dwordx4 v{DA+aa}, s[{TS}:{TS+3}], s{S_A} offen lds'); vm.add(ii)
                if aa < 3: a(f's_add_u32 s{S_A}, s{S_A}, {4*8192}')
        else:
            a(f's_lshl_b32 s{S_A}, s{S_H}, 17')
            a(f's_lshl_b32 s{S_B}, s{S_W}, 13')
            a(f's_add_u32 s{S_A}, s{S_A}, s{S_B}')
            a(f's_add_u32 s{S_A}, s{S_A}, {kk*32*1024}')
            a(f's_add_u32 s{S_B}, s{S_B}, {lds}')
            for aa in range(8):
                a(f's_mov_b32 m0, s{S_B}')
                if aa < 7: a(f's_add_u32 s{S_B}, s{S_B}, 1024')
                var = (aa & 1) | ((aa >> 2) & 1) << 1
                a(f'buffer_load_dwordx4 v{DO+var}, s[{TS}:{TS+3}], s{S_A} offen lds'); vm.add(ii)
                if aa < 7: a(f's_add_u32 s{S_A}, s{S_A}, 1024')
    def in_lds(ii):
        m, kk = items[ii]
        return (m == 'q' and kk in QL) or (m == 'v' and kk == 7) or (m == 'o' and kk >= 2)
    def trread(ii):
        m, kk = items[ii]; u, n = units[ii]
        off = (u % 8) * 16384
        hi = off >= 0x8000
        if m != 'o':
            for uu in range(2):
                if in_lds(ii): kind, base = 'v', TMP + uu * 8
                else:
                    nm = {'q': WQ, 'k': WK, 'v': WV}[m](uu, kk)
                    kind, base = nm[0], int(nm[2:].split(':')[0])
                if hi: a(f'v_add_u32 v41, {off}, v{TA+uu}')
                for hf in range(2):
                    for x in range(2):
                        o = hf * 8192 + x * 512 + (0 if hi else off)
                        b = base + hf * 4 + x * 2
                        a(f'ds_read_b64_tr_b16 {kind}[{b}:{b+1}], v{41 if hi else TA+uu} offset:{o}')
        else:
            for P in range(4):
                if in_lds(ii): kind, base = 'v', TMP + P * 8
                else: kind, base = WOreg(P, kk)
                a(f'v_xor_b32 v41, {(P&1)*16 + (P>>1)*128}, v{TO}')
                a(f'v_add_u32 v41, {off}, v41')
                for hf in range(2):
                    for x in range(2):
                        b = base + hf * 4 + x * 2
                        a(f'ds_read_b64_tr_b16 {kind}[{b}:{b+1}], v41 offset:{hf*16384 + x*2048}')
    def writeback(ii):
        m, kk = items[ii]; u, n = units[ii]
        off = (u % 8) * 16384
        a(f'v_add_u32 v41, {off}, v{WL}')
        for f in range(2 * n):
            for hf in range(2):
                a(f'ds_write_b128 v41, {vr(TMP + f*8 + hf*4, 4)} offset:{(f>>1)*16384 + (f&1)*2048 + hf*1024}')
    nxt = 0
    free_upto = CH_DEPTH
    def try_issue():
        nonlocal nxt
        while nxt < len(items) and units[nxt][0] + units[nxt][1] <= free_upto:
            issue(nxt); nxt += 1
    from roles import wait_flags, grp_flag
    a(f'v_mov_b32 v44, 1')
    for k in range(1, 4): a(f'v_mov_b32 v{44+k}, 0')
    a(f's_lshl_b32 s{S_PLD}, s{S_H}, 13'); a(f's_lshl_b32 s{S_B}, s{S_W}, 11')
    a(f's_add_u32 s{S_PLD}, s{S_PLD}, s{S_B}'); a(f's_add_u32 s{S_PLD}, s{S_PLD}, {WS_PART:#x}')
    a(f's_add_u32 s{S_PST}, s{S_PLD}, 0x40000')
    a(f'v_mov_b32 v48, s{S_SENT}'); a(f'v_mov_b32 v49, s{S_SENT}')
    a(f's_lshl_b32 s{S_MST}, s{S_H}, 8'); a(f's_lshl_b32 s{S_B}, s{S_W}, 13')
    a(f's_add_u32 s{S_MST}, s{S_MST}, s{S_B}'); a(f's_add_u32 s{S_MST}, s{S_MST}, {WS_MEMR:#x}')
    a(f's_lshl_b32 s{S_FLG}, s{S_H}, 7'); a(f's_add_u32 s{S_FLG}, s{S_FLG}, {WS_FLAG:#x}')
    a(f's_lshl_b32 s{S_KV}, s{S_H}, 15'); a(f's_lshl_b32 s{S_T0}, s{S_W}, 11')
    a(f's_add_u32 s{S_KV}, s{S_KV}, s{S_T0}'); a(f's_add_u32 s{S_KV}, s{S_KV}, {WS_QKV + 8192:#x}')
    a(f's_add_u32 s{S_KXL}, s{S_T0}, {L_KX}')
    a(f's_mov_b32 s{S_W2K}, s{S_T0}')
    a(f's_mov_b32 s{S_M0M}, s{S_T0}')
    def kx_dma():
        a(f's_mov_b32 m0, s{S_KXL}')
        a(f'buffer_load_dwordx4 v{L16}, s[{WS}:{WS+3}], s{S_KV} offen sc1 lds')
        a(f'buffer_load_dwordx4 v{L16}, s[{WS}:{WS+3}], s{S_KV} offen offset:1024 sc1 lds')
    def vx_load():
        a(f's_add_u32 s{S_T0}, s{S_KV}, 8192')
        for u in range(2):
            a(f'buffer_load_dwordx4 {vr(VX+4*u,4)}, v{L16}, s[{WS}:{WS+3}], s{S_T0} offen offset:{u*1024} sc1')
    try_issue()
    for sl in (S_PLD, S_PST):
        for k in range(2):
            a(f'buffer_store_dwordx4 v[44:47], v{L16}, s[{WS}:{WS+3}], s{sl} offen offset:{k*1024}'); vm.add('init')
    a(f'buffer_store_dwordx2 v[48:49], v{SS}, s[{WS}:{WS+3}], s{S_MST} offen'); vm.add('init')
    a(f'buffer_load_dword v50, off, s[{DB}:{DB+3}], 0 offset:{DBG_NONCE} sc1'); vm.add('nonce')
    PA = 112
    I_FLAG, I_POLL, I_EVAL = 9, IPE[0], IPE[1]
    S_OK = 59
    Lnn = a.newlabel('L_chnn')
    for ii in range(len(items)):
        n = vm.after(ii)
        if ii == I_FLAG: n = min(n, vm.after('nonce'))
        if ii == I_EVAL: n = min(n, vm.after('poll'))
        a(f's_waitcnt vmcnt({min(63, n)}) lgkmcnt(0)')
        a('s_barrier')
        if 'sttime' in opt:
            a(f's_memtime s[96:97]'); a('s_waitcnt lgkmcnt(0)'); a(f'v_mov_b32 v118, s96')
            a(f's_lshl_b32 s96, s{S_H}, 7'); a(f's_add_u32 s96, s96, {WS_STAMP + 0x30000 + ii*4:#x}')
            a(f'buffer_store_dword v118, off, s[{WS}:{WS+3}], s96'); vm.add('st')
        if ii > 0:
            if in_lds(ii - 1): writeback(ii - 1)
            free_upto = units[ii - 1][0] + units[ii - 1][1] + CH_DEPTH
            try_issue()
        if ii == I_FLAG:
            a(f'v_readfirstlane_b32 s{S_N}, v50')
            a(f's_cmp_lg_u32 s{S_N}, 0'); a(f's_cbranch_scc1 {Lnn}')
            get_nonce(a, 50, S_SPIN, fail)
            a.label(Lnn)
            grp_flag(a, S_T0, 50)
        if ii == I_POLL:
            a(f'v_lshrrev_b32 v{PA}, 2, v{L16}'); a(f'v_and_b32 v{PA+1}, 127, v{PA}')
            a(f's_add_u32 s{S_NEED}, s{S_N}, 2'); a(f'v_mov_b32 v{PA+5}, s{S_NEED}')
            a(f's_mov_b32 s{S_T0}, {F_LN1:#x}')
            a(f'buffer_load_dword v{PA+2}, v{PA}, s[{WS}:{WS+3}], s{S_T0} offen sc1'); vm.add('poll')
            a(f'buffer_load_dword v{PA+3}, v{PA}, s[{WS}:{WS+3}], s{S_T0} offen offset:256 sc1'); vm.add('poll')
            a(f's_mov_b32 s{S_T0}, {F_GRP:#x}')
            a(f'buffer_load_dword v{PA+4}, v{PA+1}, s[{WS}:{WS+3}], s{S_T0} offen sc1'); vm.add('poll')
            a('s_mov_b64 exec, 3'); a(f'buffer_load_dword v{PA+5}, v{L16}, s[{WS}:{WS+3}], s{S_FLG} offen sc1'); a('s_mov_b64 exec, -1'); vm.add('poll')
            srd(a, 44, P_MEM0, P_MEM0 + 1, 8192)
            for kk in range(8):
                a(f'buffer_load_dwordx4 {vr(MA+4*kk,4)}, v{M0V}, s[44:47], 0 offen offset:{kk*128}'); vm.add('m0')
        if ii == I_EVAL:
            a(f'v_bitop3_b32 v{PA+2}, v{PA+2}, v{PA+3}, s{S_N} bitop3:0x7e')
            a(f'v_bitop3_b32 v{PA+2}, v{PA+2}, v{PA+4}, s{S_N} bitop3:0xf6')
            a(f'v_cmp_ne_u32 s[56:57], 0, v{PA+2}')
            a(f'v_subrev_u32 v{PA+5}, s{S_NEED}, v{PA+5}')
            a(f'v_cmp_lt_u32 vcc, 62, v{PA+5}')
            a('s_or_b64 vcc, vcc, s[56:57]')
            a(f's_cmp_eq_u64 vcc, 0'); a(f's_cselect_b32 s{S_OK}, 1, 0')
            Lne = a.newlabel('L_chne')
            a(f's_cbranch_scc0 {Lne}')
            kx_dma(); vx_load()
            a.label(Lne)
            a(f's_mov_b32 m0, {L_SEL + 1024}')
            a(f'v_lshlrev_b32 v{PA}, 1, v{L16}')
            a(f'buffer_load_dword v{PA}, s[{WS}:{WS+3}], s{S_PLD} offen sc1 lds')
            a(f'buffer_load_dword v{PA}, s[{WS}:{WS+3}], s{S_PST} offen sc1 lds')
            a(f'buffer_load_dword v{SS}, s[{WS}:{WS+3}], s{S_MST} offen sc1 lds')
            for _ in range(3): vm.add('x')
        trread(ii)
    a('s_waitcnt lgkmcnt(0)')
    a('s_barrier')
    writeback(len(items) - 1)
    tmark(a, 0)
    def flag_load():
        a('s_mov_b64 exec, 3')
        a(f'buffer_load_dword v{FLG}, v{L16}, s[{WS}:{WS+3}], s{S_FLG} offen sc1')
        a('s_mov_b64 exec, -1')
    def flag_wait(need_sgpr):
        L = a.newlabel('L_fw')
        a(f's_mov_b32 s{S_SPIN}, 0')
        a.label(L)
        flag_load()
        a(f's_add_u32 s{S_SPIN}, s{S_SPIN}, 1')
        a(f's_cmp_gt_u32 s{S_SPIN}, {SPIN_MAX}')
        a(f's_cbranch_scc1 {fail}')
        a('s_waitcnt vmcnt(0)')
        a('s_mov_b64 exec, 3'); a(f'v_cmp_gt_u32 vcc, s{need_sgpr}, v{FLG}'); a('s_mov_b64 exec, -1')
        a(f's_cbranch_vccnz {L}')
    Lrdy = a.newlabel('L_chry'); Lv = a.newlabel('L_chv')
    a(f's_cmp_eq_u32 s{S_OK}, 1'); a(f's_cbranch_scc1 {Lrdy}')
    a(f's_mov_b32 s{S_SPIN}, 0')
    a.label(Lv)
    a(f'v_lshrrev_b32 v{PA}, 2, v{L16}'); a(f'v_mov_b32 v{PA+5}, s{S_NEED}')
    a(f's_mov_b32 s{S_T0}, {F_LN1:#x}')
    a(f'buffer_load_dword v{PA+2}, v{PA}, s[{WS}:{WS+3}], s{S_T0} offen sc1')
    a(f'buffer_load_dword v{PA+3}, v{PA}, s[{WS}:{WS+3}], s{S_T0} offen offset:256 sc1')
    a(f's_mov_b32 s{S_T0}, {F_GRP:#x}')
    a(f'buffer_load_dword v{PA+4}, v{PA+1}, s[{WS}:{WS+3}], s{S_T0} offen sc1')
    a('s_mov_b64 exec, 3'); a(f'buffer_load_dword v{PA+5}, v{L16}, s[{WS}:{WS+3}], s{S_FLG} offen sc1'); a('s_mov_b64 exec, -1')
    a(f's_add_u32 s{S_SPIN}, s{S_SPIN}, 1'); a(f's_cmp_gt_u32 s{S_SPIN}, {SPIN_MAX}'); a(f's_cbranch_scc1 {fail}')
    a('s_waitcnt vmcnt(0)')
    a(f'v_bitop3_b32 v{PA+2}, v{PA+2}, v{PA+3}, s{S_N} bitop3:0x7e')
    a(f'v_bitop3_b32 v{PA+2}, v{PA+2}, v{PA+4}, s{S_N} bitop3:0xf6')
    a(f'v_cmp_ne_u32 s[56:57], 0, v{PA+2}')
    a(f'v_subrev_u32 v{PA+5}, s{S_NEED}, v{PA+5}')
    a(f'v_cmp_lt_u32 vcc, 62, v{PA+5}')
    a('s_or_b64 vcc, vcc, s[56:57]')
    a(f's_cbranch_vccnz {Lv}')
    kx_dma(); vx_load()
    a.label(Lrdy)
    a(f's_add_u32 s{S_KXR}, s{S_N}, 64')
    tmark(a, 1)
    a(f's_mov_b32 s{S_STEP}, 0')
    a(f's_lshl_b32 s{S_KM}, s{S_H}, 8')
    a(f's_add_u32 s{S_KM}, s{S_KM}, {WS_MEMG:#x}')
    a(f's_mov_b64 s[{S_PM}:{S_PM+1}], 0')
    a(f's_cmp_lt_u32 s{S_W}, 2'); a(f's_cselect_b64 s[{S_BM}:{S_BM+1}], -1, 0')
    a(f's_and_b32 s{S_A}, s{S_W}, 1'); a(f's_lshl_b32 s{S_A}, s{S_A}, 12'); a(f's_add_u32 s{S_A}, s{S_A}, {L_KX}')
    a('s_mov_b32 s96, 0'); a('s_mov_b32 s97, 0')
    def prefetch_wq():
        for i3 in range(3):
            for u in range(2):
                for hf in range(2):
                    b = R0 + (i3 * 2 + u) * 8 + hf * 4
                    a(f'ds_read_b128 {vr(b,4)}, v{WL} offset:{i3*16384 + u*2048 + hf*1024}')
    def zero(b, n):
        for k in range(b, b + n, 2): a(f'v_mov_b64 v[{k}:{k+1}], 0')
    a('s_waitcnt lgkmcnt(0)')
    a('s_barrier')
    prefetch_wq(); zero(AQ, 24)
    a('s_waitcnt vmcnt(0)')
    for kk in range(8): a(f'ds_write_b128 v{L16}, {vr(MA+4*kk,4)} offset:{L_MEMX + kk*1024}')
    a(f's_add_u32 s{S_MLD}, s{S_M0M}, {WS_MEMG:#x}')
    a(f'v_add_u32 v{V0+2}, s{S_M0M}, v{L16}')
    a(f's_mov_b32 m0, {L_SEL + 1024}' if False else f's_mov_b32 m0, s{S_M0M}')
    a('s_waitcnt vmcnt(0) lgkmcnt(0)')
    Lmid = a.newlabel('L_chmid'); Lhead = a.newlabel('L_chhead'); Llast = a.newlabel('L_chlast'); LbarA = a.newlabel('L_chA')
    if standalone or timing: a('s_memtime s[76:77]')
    if standalone or timing: a('s_waitcnt lgkmcnt(0)')
    a(f's_branch {LbarA}')

    lg = VmTrack()
    def DS(text, tag): a(text); lg.add(tag)
    def LW(tag): a(f's_waitcnt lgkmcnt({min(15, lg.after(tag))})')
    Lslowflag = a.newlabel('L_chsf'); Lflagok = a.newlabel('L_chfo')
    Lfb = a.newlabel('L_chfb'); Lfbret = a.newlabel('L_chfr')
    X, EX, Y, O0, O1, LL, PX = AQ, AQ + 4, K1, R2, R2 + 4, R2 + 8, R2 + 12
    PM, MX, T1 = AQ + 4, AQ + 6, AQ + 7
    QF, KF, OF, WA = R0, R1, R2, MA
    CK = V0 + 2
    CKD = V1
    def delay(n):
        while n > 0:
            k = min(n, 16); a(f's_nop {k-1}'); n -= k
    nc = 'nocomm' in opt
    def mem_dma():
        if nc: return
        a(f'buffer_load_dwordx4 v{L16}, s[{WS}:{WS+3}], s{S_MLD} offen sc1 lds')
        a(f'buffer_load_dwordx4 v{L16}, s[{WS}:{WS+3}], s{S_MLD} offen offset:1024 sc1 lds')
    sw = lambda x, y: f'v_permlane32_swap_b32 v{x}, v{y}'
    ad = lambda x, y: f'v_add_f32 v{x}, v{x}, v{y}'
    cv = lambda d, x, y: f'v_cvt_pk_bf16_f32 v{d}, v{x}, v{y}'
    ex = lambda d, s_: f'v_exp_f32 v{d}, v{s_}'
    def fill(lst):
        for x in lst:
            if isinstance(x, tuple):
                if x[0] == 'ds': DS(x[1], x[2])
                elif x[0] == 'lw': LW(x[1])
                elif x[0] == 'lab': a.label(x[1])
                elif x[0] == 'S': S(x[1])
            else: a(x)
    def S(n=1):
        for _ in range(n):
            if sal: a(sal.pop(0))
    ckread = f'ds_read2st64_b32 {vr(CKD,2)}, v{CK} offset0:0 offset1:4'
    def idle_work(wave0):
        a(f's_add_u32 s{S_NEED}, s{S_NEED}, 1')
        a(f's_min_u32 s{S_NEED}, s{S_NEED}, s{S_KXR}')
        a('s_mov_b64 exec, 3' if 'noflag' not in opt else 's_mov_b64 exec, 0'); a(f'v_cmp_gt_u32 vcc, s{S_NEED}, v{FLG}'); a('s_mov_b64 exec, -1')
        prefetch_wq()
        a(f'v_add_u32 v{CK}, s{S_M0M}, v{L16}')
        L1 = a.newlabel('L_chf1')
        a(f's_cbranch_vccz {L1}')
        flag_wait(S_NEED)
        a.label(L1)
        zero(K0, 4)
        if not wave0: zero(AQ, 8); zero(K1, 4)
    def diag_head():
        if 'steady' in opt:
            Ls1 = a.newlabel('L_st1'); Ls2 = a.newlabel('L_st2')
            a(f's_cmp_eq_u32 s{S_STEP}, 8'); a(f's_cbranch_scc0 {Ls1}'); a('s_memtime s[76:77]'); a('s_mov_b32 s96, 0'); a.label(Ls1)
            a(f's_cmp_eq_u32 s{S_STEP}, 58'); a(f's_cbranch_scc0 {Ls2}'); a('s_memtime s[90:91]'); a('s_mov_b32 s97, s96'); a.label(Ls2)
        if 'avg' in opt:
            La = a.newlabel('L_av')
            a('s_waitcnt lgkmcnt(0)')
            a(f's_sub_u32 s100, s{S_STEP}, 10'); a('s_cmp_lt_u32 s100, 50'); a(f's_cbranch_scc0 {La}')
            a('s_sub_u32 s100, s46, s44'); a('s_add_u32 s97, s97, s100')
            a.label(La)
        if diag and STAMPS != () and 'avg' not in opt:
            Lnd = a.newlabel('L_nd')
            a(f's_cmp_eq_u32 s{S_STEP}, 32')
            a(f's_cbranch_scc0 {Lnd}')
            a('s_waitcnt vmcnt(0) lgkmcnt(0)')
            for k in range(16): a(f'v_mov_b32 v{MA+k}, s{44+2*k}')
            a(f's_lshl_b32 s{S_T0}, s{S_H}, 9'); a(f's_lshl_b32 s{S_T1}, s{S_W}, 7'); a(f's_add_u32 s{S_T0}, s{S_T0}, s{S_T1}'); a(f's_add_u32 s{S_T0}, s{S_T0}, {WS_STAMP:#x}')
            a('s_mov_b64 exec, 1')
            for k in range(4): a(f'buffer_store_dwordx4 {vr(MA+4*k,4)}, off, s[{WS}:{WS+3}], s{S_T0} offset:{16*k}')
            a('s_mov_b64 exec, -1')
            a('s_waitcnt vmcnt(0)')
            a.label(Lnd)
    def verify(inflight, CK=CK, CKD=CKD):
        Lq = a.newlabel('L_chq'); Lqo = a.newlabel('L_chqo'); Lqx = a.newlabel('L_chqx')
        a(f's_mov_b32 s{S_SPIN}, 0')
        a.label(Lq)
        a(f's_waitcnt vmcnt({2*(inflight-1)})')
        a(f'ds_read2st64_b32 {vr(CKD,2)}, v{CK} offset0:0 offset1:4')
        if inflight > 1: mem_dma()
        a(f's_add_u32 s{S_SPIN}, s{S_SPIN}, 1')
        if diag: a('s_add_u32 s96, s96, 0x10000')
        a('s_waitcnt lgkmcnt(0)')
        a(f'v_cmp_u_f32 vcc, v{CKD}, v{CKD+1}')
        a(f's_cbranch_vccz {Lqo}')
        a(f'v_cmp_eq_u32 vcc, s{S_SENT}, v{CKD}')
        a(f'v_cmp_eq_u32 s[100:101], s{S_SENT}, v{CKD+1}')
        if inflight == 1: mem_dma()
        a(f's_or_b64 vcc, vcc, s[100:101]')
        a(f's_cbranch_vccz {Lqo}')
        a(f's_cmp_gt_u32 s{S_SPIN}, {SPIN_MAX}')
        a(f's_cbranch_scc0 {Lq}')
        a(f's_branch {fail}')
        a.label(Lqo)
    a.raw('.p2align 6')
    a.label(Lhead)
    a('s_barrier')
    a(f's_cmp_eq_u32 s{S_STEP}, 63'); a(f's_cbranch_scc1 {Llast}')
    delay(d2w)
    Lhead0 = a.newlabel('L_chh0')
    a.label(Lhead0)
    diag_head()
    delay(d2)
    stamp(a, diag, 0)
    for _ in range(nA - 1): mem_dma(); delay(d3)
    mem_dma()
    if not nc: verify(nA)
    a.label(LbarA)
    stamp(a, diag, 1)
    a('s_barrier')
    stamp(a, diag, 2)
    KORD = (0, 2, 4, 6, 1, 3, 5, 7)
    def mar(kk): return ('ds', f'ds_read_b128 {vr(MA+4*kk,4)}, v{L16} offset:{L_MEMX + kk*1024}', ('ma', kk))
    fill([mar(0), mar(2), mar(4), mar(6)])
    sal = [f's_add_u32 s{S_KV}, s{S_KV}, {0 if "samekv" in opt else 0x100000}', f's_add_u32 s{S_B}, s{S_KV}, s{S_W2K}',
            f's_add_u32 s{S_KM}, s{S_KM}, 8192',
            f's_add_u32 s{S_T0}, s{S_STEP}, 1', f's_and_b32 s{S_T0}, s{S_T0}, 3', f's_lshl_b32 s{S_T0}, s{S_T0}, 13', f's_add_u32 s{S_T0}, s{S_T0}, {WS_MEMR:#x}',
            f's_lshl_b32 s{S_T1}, s{S_H}, 8',
            f's_add_u32 s{S_MST}, s{S_T0}, s{S_T1}', f's_xor_b32 s{S_MRS}, s{S_MST}, 0x4000',
            f's_add_u32 s{S_MLD}, s{S_T0}, s{S_M0M}',
            f's_and_b32 s{S_T0}, s{S_STEP}, 1', f's_lshl_b32 s{S_T0}, s{S_T0}, 18', f's_add_u32 s{S_T0}, s{S_T0}, {WS_PART:#x}',
            f's_add_u32 s{S_PST}, s{S_T0}, s{S_T1}', f's_add_u32 s{S_PST2}, s{S_PST}, 0x8000',
            f's_lshl_b32 s{S_PLD}, s{S_H}, 13', f's_add_u32 s{S_PLD}, s{S_PLD}, s{S_T0}',
            f's_bfe_u32 s{S_PAR}, s{S_STEP}, 0x10001']
    pub = 'nopub' not in opt
    def run_seq(seq, gaps):
        for gi, (acc, kk, W, wait) in enumerate(seq):
            if wait is not None: LW(wait)
            smf(a, acc, MA + 4 * kk, W)
            fill(gaps.get(gi, []))
    def wvf(u, hf): return ('ds', f'ds_read_b128 {vr(R2+8*u+4*hf,4)}, v{WL} offset:{3*16384 + u*2048 + hf*1024}', ('wv', u))
    def kxr(t): return ('ds', f'ds_read_b128 {vr(KF+4*t,4)}, v{R0+1} offset:{t*1024}', ('kx', t))
    def qfr(t, x): return ('ds', f'ds_read_b64_tr_b16 {vr(QF+4*t+2*x,2)}, v{TR} offset:{L_QX + (32*t+16*x)*32}', ('qf', t))
    pubs = [f's_mov_b64 exec, s[{S_PM}:{S_PM+1}]', f'buffer_store_dwordx2 {vr(V0,2)}, v{SS}, s[{WS}:{WS+3}], s{S_KM} offen sc1', 's_mov_b64 exec, -1'] if pub else []
    seqQ = [(AQ + 4 * u, kk, WQ(u, kk), ('ma', kk) if u == 0 else None) for kk in KORD for u in range(2)]
    gQ = {0: [mar(1)], 1: [mar(3)], 2: [mar(5)], 3: [mar(7)],
          4: pubs, 5: [('S', 2), f'v_lshlrev_b32 v{R0}, 2, v{L16}'],
          6: [f's_mov_b32 m0, {L_SEL + 1024}', ('S', 1)] + ([f'buffer_load_dword v{R0}, s[{WS}:{WS+3}], s{S_B} offen sc1 lds'] if 'notouch' not in opt else []),
          7: [('S', 2), f'v_add_u32 v{R0+1}, s{S_A}, v{L16}'],
          8: [('S', 1), kxr(0)], 9: [('S', 2), kxr(1)], 10: [('S', 1), kxr(2)], 11: [('S', 2), kxr(3)],
          12: [('S', 1), wvf(0, 0)], 13: [('S', 2), wvf(0, 1)], 14: [('S', 1), wvf(1, 0)], 15: [('S', 2), wvf(1, 1)]}
    run_seq(seqQ, gQ)
    stamp(a, diag, 3)
    seqK = [(AKt[u], kk, WK(u, kk), None) for u in range(2) for kk in range(8)]
    gK = {0: [('S', 2), f'v_mov_b64 {vr(V0,2)}, 0'], 1: [f'v_mov_b64 {vr(V0+2,2)}, 0'],
          2: [sw(AQ, AQ + 4)], 3: [sw(AQ + 1, AQ + 5), ad(AQ, AQ + 4)], 4: [sw(AQ + 2, AQ + 6), ad(AQ + 1, AQ + 5)],
          5: [sw(AQ + 3, AQ + 7), cv(AQ, AQ, AQ + 1)], 6: [ad(AQ + 2, AQ + 6), ad(AQ + 3, AQ + 7)],
          7: [cv(AQ + 1, AQ + 2, AQ + 3), ('ds', f'ds_write2_b64 v{QW}, {vr(AQ,2)}, {vr(AQ,2)} offset0:0 offset1:2', 'qw')],
          8: [f'v_mov_b64 {vr(V1,2)}, 0'], 9: [f'v_mov_b64 {vr(V1+2,2)}, 0'],
          10: [cv(K0, K0, K0 + 1)], 11: [('lw', 'qw'), 's_barrier', cv(K0 + 1, K0 + 2, K0 + 3)],
          12: [qfr(0, 0), qfr(0, 1)], 13: [('ds', f'ds_write_b64 v{KW}, {vr(K0,2)}', 'kw0')], 14: [qfr(1, 0), qfr(1, 1)], 15: [f's_cmp_lt_u32 s{S_W}, 2', qfr(2, 0), qfr(2, 1)]}
    run_seq(seqK, gK)
    assert not sal, sal
    stamp(a, diag, 4)
    def V(i): smf(a, AVt[i >> 3], MA + 4 * (i & 7), WV(i >> 3, i & 7))
    def kmf(t, x): DS(f'ds_read_b64_tr_b16 {vr(KF+4*t+2*x,2)}, v{TR} offset:{L_KXCH + (32*t+16*x)*32}', ('km', t))
    def wof(P, t, hf): DS(f'ds_read_b128 {vr(WO_SLOT[(P,t)]+4*hf,4)}, v{WL} offset:{(2*(t-2) + (P>>1))*16384 + (P&1)*2048 + hf*1024}', ('wo', P, t))
    nov = 'novx' in opt
    kdma = lambda k: None if nov else a(f'buffer_load_dwordx4 v{L16}, s[{WS}:{WS+3}], s{S_KV} offen offset:{1024*k} sc1 lds')
    vxl = lambda k: None if nov else None
    V(0); fill([qfr(3, 0), qfr(3, 1)])
    V(1); cvt(a, K0 + 2, K1, K1 + 1); cvt(a, K0 + 3, K1 + 2, K1 + 3)
    DS(f'ds_write_b64 v{KW}, {vr(K0+2,2)} offset:512', 'kw1')
    LX = a.newlabel('L_chX'); LJ = a.newlabel('L_chJ')
    a(f's_cbranch_scc1 {LX}')
    saved = list(lg.ops)
    V(2); V(3); a(f's_mov_b32 m0, s{S_KXL}'); a(f'v_xor_b32 v{WL}, 0x10000, v{WL}')
    V(4)
    LW('kw1'); a('s_barrier')
    stamp(a, diag, 5)
    for t in range(4): kmf(t, 0); kmf(t, 1)
    V(5); V(6)
    for t in range(4):
        LW(('km', t))
        mf32(a, Y, KF + 4 * t, QF + 4 * t, '0' if t == 0 else Y)
    V(7); kdma(0)
    V(8)
    a(sw(Y, Y + 2)); a(sw(Y + 1, Y + 3)); a(ad(Y, Y + 2)); a(ad(Y + 1, Y + 3))
    a(f'v_mul_f32 v{Y}, s{S_CS}, v{Y}'); a(f'v_mul_f32 v{Y+1}, s{S_CS}, v{Y+1}')
    a(ex(Y + 2, Y)); a(ex(Y + 3, Y + 1))
    a(cv(EX, Y + 2, Y + 3))
    DS(f'ds_write_b32 v{PW}, v{EX}', 'pw')
    V(9); cvt(a, V0, V0, V0 + 1)
    a(f's_branch {LJ}')
    opsM = list(lg.ops)
    lg.ops = list(saved)
    a.label(LX)
    for t in range(4):
        if t in (0, 3): LW(('qf', 2 if t == 0 else 3))
        mf32(a, X, KF + 4 * t, QF + 4 * t, '0' if t == 0 else X)
        if t == 0: a(f's_mov_b32 m0, s{S_KXL}'); a(f'v_xor_b32 v{WL}, 0x10000, v{WL}')
    LW('kw1'); a('s_barrier')
    V(2); V(3); a(ex(EX, X))
    V(4); a(ex(EX + 1, X + 1))
    V(5); a(ex(EX + 2, X + 2))
    V(6); a(ex(EX + 3, X + 3))
    V(7); kdma(0); a(cv(EX, EX, EX + 1))
    V(8); a(cv(EX + 1, EX + 2, EX + 3))
    DS(f'ds_write_b64 v{PW}, {vr(EX,2)}', 'pw')
    V(9); cvt(a, V0, V0, V0 + 1)
    assert [o for o in lg.ops[lg.ops.index('pw'):]] == [o for o in opsM[opsM.index('pw'):]]
    a.label(LJ)
    V(10); cvt(a, V0 + 1, V0 + 2, V0 + 3)
    V(11); kdma(1)
    V(12)
    if 'noflag' not in opt: flag_load()
    LW('pw'); a('s_barrier')
    stamp(a, diag, 6)
    PXR = R1 + 12
    DS(f'ds_read_b64 {vr(PM,2)}, v{L16} offset:{L_PM}', 'pm')
    DS(f'ds_read_b128 {vr(PXR,4)}, v{L16} offset:{L_PX}', 'px')
    V(13)
    V(14)
    V(15)
    a(f's_add_u32 s{S_T0}, s{S_KV}, 8192')
    LW('px')
    mf32(a, LL, ONES, PXR, '0'); wof(0, 2, 0)
    mf32(a, O0, VX, PXR, '0'); wof(0, 2, 1); cvt(a, V0 + 2, V1, V1 + 1)
    mf32(a, O1, VX + 4, PXR, '0'); wof(0, 3, 0); cvt(a, V0 + 3, V1 + 2, V1 + 3)
    vxl = lambda t: None if nov else a(f'buffer_load_dwordx4 {vr(VX+4*t,4)}, v{L16}, s[{WS}:{WS+3}], s{S_T0} offen offset:{t*1024} sc1')
    mf16(a, LL, HALF, PM, LL); vxl(0); vxl(1)
    mf16(a, O0, V0, PM, O0); wof(0, 3, 1)
    mf16(a, O1, V0 + 2, PM, O1); wof(1, 2, 0)
    a(f'v_rcp_f32 v{MX}, v{LL}')
    a(f'v_max_f32 v{T1}, v{LL}, v{MX}')
    a(f'v_cmp_nge_f32 vcc, s{S_LIM}, v{T1}')
    for r in range(4): a(f'v_mul_f32 v{O0+r}, v{O0+r}, v{MX}')
    cvt(a, O0, O0, O0 + 1); cvt(a, O0 + 1, O0 + 2, O0 + 3)
    a(f's_cbranch_vccnz {Lfb}')
    DS(f'ds_write_b64 v{OW}, {vr(O0,2)}', 'ow0')
    for r in range(4): a(f'v_mul_f32 v{O1+r}, v{O1+r}, v{MX}')
    cvt(a, O1, O1, O1 + 1); cvt(a, O1 + 1, O1 + 2, O1 + 3)
    a.label(Lfbret)
    DS(f'ds_write_b64 v{OW}, {vr(O1,2)} offset:512', 'ow1')
    zero(WA, 16)
    LW('ow1'); a('s_barrier')
    stamp(a, diag, 7)
    for t in range(4): DS(f'ds_read_b128 {vr(OF+4*t,4)}, v{L16} offset:{L_OX + t*1024}', ('of', t))
    rest = [(1, 2, 1), (1, 3, 0), (1, 3, 1), (2, 2, 0), (2, 2, 1), (2, 3, 0), (2, 3, 1), (3, 2, 0), (3, 2, 1), (3, 3, 0), (3, 3, 1)]
    for P in range(4):
        for t in range(4):
            if P == 0: LW(('of', t))
            elif t >= 2: LW(('wo', P, t))
            smf(a, WA + 4 * P, OF + 4 * t, WO(P, t))
            if rest: wof(*rest.pop(0))
            if P >= 1 and t == 2: cvt(a, WA + 8 * ((P-1) >> 1) + 2 * ((P-1) & 1), WA + 4 * (P-1), WA + 4 * (P-1) + 1)
            if P >= 1 and t == 3: cvt(a, WA + 8 * ((P-1) >> 1) + 2 * ((P-1) & 1) + 1, WA + 4 * (P-1) + 2, WA + 4 * (P-1) + 3)
            if P == 2 and t == 0: a(f'v_bfi_b32 v{WA}, 1, s{S_PAR}, v{WA}')
            if P == 3 and t == 1: a(f'v_xor_b32 v{WL}, 0x10000, v{WL}')
            if P == 3 and t == 0 and 'nops' not in opt: a(f'buffer_store_dwordx4 {vr(WA,4)}, v{PS}, s[{WS}:{WS+3}], s{S_PST} offen')
    a(f'v_bfi_b32 v{WA+8}, 1, s{S_PAR}, v{WA+8}')
    a(f's_add_u32 s{S_STEP}, s{S_STEP}, 1')
    a(f's_mov_b32 m0, s{S_M0M}')
    a(f's_cmp_eq_u32 s{S_W}, {77 if nc else 0}')
    cvt(a, WA + 10, WA + 12, WA + 13); cvt(a, WA + 11, WA + 14, WA + 15)
    if 'nops' not in opt: a(f'buffer_store_dwordx4 {vr(WA+8,4)}, v{PS}, s[{WS}:{WS+3}], s{S_PST2} offen')
    stamp(a, diag, 8)
    Lp = a.newlabel('L_chp'); Lw0 = a.newlabel('L_chw0')
    a(f's_cbranch_scc1 {Lw0}')
    a('s_waitcnt vmcnt(2)')
    idle_work(False)
    a('s_waitcnt lgkmcnt(0)')
    a(f's_branch {Lhead}')
    a.label(Lw0)
    RD, TG = AQ, K1
    SETS = (MA, R0)
    two = nS == 2
    a(f'ds_read_b128 {vr(AQ+4,4)}, v{L16} offset:{L_SEL}')
    a(f'v_mov_b32 v{TG}, s{S_SENT}'); a(f'v_mov_b32 v{TG+1}, s{S_SENT}')
    a(f'buffer_store_dwordx2 {vr(TG,2)}, v{SS}, s[{WS}:{WS+3}], s{S_MRS} offen')
    a(f's_add_u32 s{S_T1}, s{S_PLD}, 4096')
    a(f's_mov_b64 s[{S_PM}:{S_PM+1}], -1')
    if not two and pre:
        a('s_waitcnt vmcnt(5)'); idle_work(True)
    a(f's_mov_b32 s{S_SPIN}, 0')
    delay(d1)
    def sweep(b):
        for i in range(8):
            a(f'buffer_load_dwordx4 {vr(b+4*i,4)}, v{L16}, s[{WS}:{WS+3}], s{S_PLD if i < 4 else S_T1} offen offset:{(i&3)*1024} sc1')
    def check(b, base, br):
        if diag: a('s_add_u32 s96, s96, 1')
        for i in range(8):
            a(f's_waitcnt vmcnt({base-i})' + (' lgkmcnt(0)' if i == 0 else ''))
            mf32(a, RD, b + 4 * i, AQ + 4, '0' if i == 0 else RD)
            if i & 1: a(f'v_bitop3_b32 v{TG+(i>>1)}, v{b+4*i-4}, v{b+4*i}, s{S_PAR} bitop3:0x7e')
            if i == 5: a(f'v_or3_b32 v{TG}, v{TG}, v{TG+1}, v{TG+2}')
        a(f'v_or_b32 v{TG}, v{TG}, v{TG+3}')
        a(f'v_and_b32 v{TG}, 1, v{TG}')
        a(f'v_cmp_ne_u32 vcc, 0, v{TG}')
        cvt(a, V0, RD, RD + 1); cvt(a, V0 + 1, RD + 2, RD + 3)
        a(br)
    Lok = a.newlabel('L_chok'); Lw0h = a.newlabel('L_chw0h')
    stamp(a, diag, 9)
    sweep(SETS[0])
    if two: delay(d4); sweep(SETS[1])
    elif not pre:
        a('s_waitcnt vmcnt(11)'); idle_work(True)
    check(SETS[0], 15 if two else 7, f's_cbranch_vccnz {Lp}')
    a.label(Lok)
    a(f'buffer_store_dwordx2 {vr(V0,2)}, v{SS}, s[{WS}:{WS+3}], s{S_MST} offen')
    stamp(a, diag, 11)
    a('s_barrier')
    a(f's_cmp_eq_u32 s{S_STEP}, 63'); a(f's_cbranch_scc1 {Llast}')
    zero(AQ, 8); zero(K1, 4)
    if two:
        a('s_waitcnt vmcnt(1)')
        idle_work(True)
    a(f's_branch {Lhead0}')
    a.label(Lp)
    if two:
        sweep(SETS[0]); check(SETS[1], 15, f's_cbranch_vccz {Lok}')
        sweep(SETS[1]); check(SETS[0], 15, f's_cbranch_vccz {Lok}')
    else:
        sweep(SETS[0]); check(SETS[0], 7, f's_cbranch_vccz {Lok}')
    a(f's_add_u32 s{S_SPIN}, s{S_SPIN}, 1')
    a(f's_cmp_gt_u32 s{S_SPIN}, {SPIN_MAX}')
    a(f's_cbranch_scc0 {Lp}')
    a(f's_branch {fail}')

    a.label(Lfb)
    a.fence(16)
    FX0, FX1, FY = R2, R2 + 4, K1
    a(f's_lshl_b32 s{S_T1}, s{S_W}, 10'); a(f'v_add_u32 v{T1}, s{S_T1}, v{L16}')
    Lf2 = a.newlabel('L_chf2'); Lf3 = a.newlabel('L_chf3')
    a(f's_cmp_lt_u32 s{S_W}, 2'); a(f's_cbranch_scc0 {Lf2}')
    a(f'ds_write_b128 v{T1}, {vr(X,4)} offset:{L_FB}')
    a(f's_branch {Lf3}')
    a.label(Lf2)
    a(f'ds_write_b128 v{T1}, {vr(Y,4)} offset:{L_FB}')
    a.label(Lf3)
    a('s_waitcnt vmcnt(0) lgkmcnt(0)'); a('s_barrier')
    a(f's_sub_u32 s{S_T1}, s{S_T0}, {0 if "samekv" in opt else 0x100000}')
    for u in range(2): a(f'buffer_load_dwordx4 {vr(VX+4*u,4)}, v{L16}, s[{WS}:{WS+3}], s{S_T1} offen offset:{u*1024} sc1')
    a(f'ds_read_b128 {vr(FX0,4)}, v{L16} offset:{L_FB}'); a(f'ds_read_b128 {vr(FX1,4)}, v{L16} offset:{L_FB+1024}'); a(f'ds_read_b128 {vr(FY,4)}, v{L16} offset:{L_FB+2048}')
    a('s_waitcnt lgkmcnt(0)')
    a(f'v_max3_f32 v{MX}, v{FX0}, v{FX0+1}, v{FX0+2}')
    a(f'v_max3_f32 v{MX}, v{MX}, v{FX0+3}, v{FX1}')
    a(f'v_max3_f32 v{MX}, v{MX}, v{FX1+1}, v{FX1+2}')
    a(f'v_max3_f32 v{MX}, v{MX}, v{FX1+3}, v{FY}')
    a(f'v_max_f32 v{MX}, v{MX}, v{FY+1}')
    a(f'v_mov_b32 v{T1}, v{MX}'); a(sw(MX, T1)); a(f'v_max_f32 v{MX}, v{MX}, v{T1}')
    a(f'v_mov_b32 v{T1}, v{MX}'); a(f'v_permlane16_swap_b32 v{MX}, v{T1}'); a(f'v_max_f32 v{MX}, v{MX}, v{T1}')
    for r in range(8):
        a(f'v_sub_f32 v{FX0+r}, v{FX0+r}, v{MX}'); a(ex(FX0 + r, FX0 + r))
    for r in range(4): cvt(a, PX + r, FX0 + 2 * r, FX0 + 2 * r + 1)
    for r in range(2):
        a(f'v_sub_f32 v{FY+2+r}, v{FY+r}, v{MX}'); a(ex(FY + 2 + r, FY + 2 + r))
    cvt(a, PM, FY + 2, FY + 3); a(f'v_mov_b32 v{PM+1}, v{PM}'); a(sw(PM, PM + 1))
    a('s_waitcnt vmcnt(0)')
    mf32(a, LL, ONES, PX, '0'); mf32(a, O0, VX, PX, '0'); mf32(a, O1, VX + 4, PX, '0')
    mf16(a, LL, HALF, PM, LL); mf16(a, O0, V0, PM, O0); mf16(a, O1, V0 + 2, PM, O1)
    a.fence(12)
    vxl(0); vxl(1)
    a(f'v_rcp_f32 v{MX}, v{LL}')
    for r in range(8): a(f'v_mul_f32 v{O0+r}, v{O0+r}, v{MX}')
    cvt(a, O0, O0, O0 + 1); cvt(a, O0 + 1, O0 + 2, O0 + 3); cvt(a, O1, O1, O1 + 1); cvt(a, O1 + 1, O1 + 2, O1 + 3)
    a(f'ds_write_b64 v{OW}, {vr(O0,2)}')
    a(f's_branch {Lfbret}')

    a.label(Llast)
    a(f's_mov_b64 exec, s[{S_PM}:{S_PM+1}]')
    a(f'buffer_store_dwordx2 {vr(V0,2)}, v{SS}, s[{WS}:{WS+3}], s{S_KM} offen sc1')
    a('s_mov_b64 exec, -1')
    if standalone:
        a('s_memtime s[98:99]'); a('s_memrealtime s[92:93]')
        a('s_waitcnt lgkmcnt(0)')
        if 'clk' in opt: a('s_sub_u32 s96, s92, s94')
        if 'steady' in opt: a('s_mov_b32 s98, s90'); a('s_mov_b32 s96, s97')
        if 'avg' in opt: a('s_mov_b32 s96, s97')
        a(f'v_mov_b32 v{MA}, s78'); a(f'v_mov_b32 v{MA+1}, s76'); a(f'v_mov_b32 v{MA+2}, s98'); a(f'v_mov_b32 v{MA+3}, s96')
        a(f's_lshl_b32 s{S_T0}, s{S_H}, 2'); a(f's_add_u32 s{S_T0}, s{S_T0}, s{S_W}'); a(f's_lshl_b32 s{S_T0}, s{S_T0}, 4'); a(f's_add_u32 s{S_T0}, s{S_T0}, {WS_STAMP + 0x10000:#x}')
        a(f'buffer_store_dwordx4 {vr(MA,4)}, off, s[{WS}:{WS+3}], s{S_T0}')
    a(f's_branch {done}')
```

```python
from asmgen import *

KA = dict(x=0, mem0=8, Wq=16, Wk=24, Wv=32, Wo=40, w1=64, w2=72, c=80, wmod=88, out=96, dbg=104, ws=112)
WS_MOD   = 0x0000000
WS_FLAG  = 0x0010000
WS_STAMP = 0x0020000
WS_JUNK  = 0x00F0000
WS_PART  = 0x0100000
WS_MEMR  = 0x0180000
WS_MEMG  = 0x1200000
WS_MEMD  = 0x0190000
WS_H1    = 0x0200000
WS_H2    = 0x0400000
WS_X1    = 0x0600000
WS_APART = 0x1400000
WS_FPART = 0x0E00000
WS_QKV   = 0x2000000
WS_SIZE  = 0x10000000
SENT = 0x7F817F81
SPIN_MAX = 100000
SCALE_LOG2E = (128 ** -0.5) * 1.4426950408889634

import struct
def f32bits(x): return struct.unpack('<I', struct.pack('<f', x))[0]

class VmTrack:
    def __init__(self): self.ops = []
    def add(self, tag): self.ops.append(tag)
    def after(self, tag):
        idx = max(i for i, t in enumerate(self.ops) if t == tag)
        return len(self.ops) - 1 - idx

def srd(a, s, lo, hi, size):
    a(f's_mov_b32 s{s}, s{lo}')
    a(f's_and_b32 s{s+1}, s{hi}, 0xffff')
    a(f's_mov_b32 s{s+2}, {size:#x}')
    a(f's_mov_b32 s{s+3}, 0x20000')

DBG_RANK0 = 0; DBG_CHAIN = 4; DBG_ERR = 64
DBG_RANK = 128
DBG_NONCE = 8
N_MOD = 96; N_LN1 = 128
NAME = 'adaLN_cond__memory_aug_recurrent_mem_tr__dense_activation_silu__prompt_kernel'

def header(name, lds=163840, grid=256):
    return f"""; @launch grid=({grid},1,1) block=(256,1,1) lds={lds}
.amdgcn_target "amdgcn-amd-amdhsa--gfx950"
.text
.globl {name}
.p2align 8
.type {name},@function
{name}:
"""
def footer(name):
    return f""".section .rodata,"a"
.p2align 6
.amdhsa_kernel {name}
  .amdhsa_next_free_vgpr 512
  .amdhsa_next_free_sgpr 102
  .amdhsa_accum_offset 256
  .amdhsa_group_segment_fixed_size 0
  .amdhsa_kernarg_size 120
  .amdhsa_user_sgpr_count 2
  .amdhsa_user_sgpr_kernarg_segment_ptr 1
  .amdhsa_system_sgpr_workgroup_id_x 1
.end_amdhsa_kernel
"""

def prologue(a, touch=True, codepf=0):
    a('s_cmp_ge_u32 s2, 256')
    a('s_cbranch_scc1 L_end')
    a(f's_load_dwordx4 s[44:47], s[0:1], {KA["dbg"]}')
    a('s_load_dwordx16 s[48:63], s[0:1], 0')
    a('s_load_dwordx8 s[64:71], s[0:1], 64')
    a('s_load_dwordx2 s[72:73], s[0:1], 96')
    a('s_getreg_b32 s5, hwreg(HW_REG_XCC_ID, 0, 4)')
    a('v_lshrrev_b32 v1, 6, v0')
    a('s_and_b32 s5, s5, 7')
    a('v_readfirstlane_b32 s3, v1')
    a('s_lshl_b32 s6, s5, 2')
    a(f's_add_u32 s6, s6, {DBG_RANK}')
    a('s_cmp_eq_u32 s5, 0')
    a(f's_cselect_b32 s6, {DBG_RANK0}, s6')
    a('s_waitcnt lgkmcnt(0)')
    srd(a, 16, 44, 45, 256)
    srd(a, 8, 46, 47, WS_SIZE)
    a('s_cmp_eq_u32 s3, 0')
    a('s_cbranch_scc0 L_touch')
    a('v_mov_b32 v1, 1')
    a('s_mov_b64 exec, 1')
    a('buffer_atomic_add v1, off, s[16:19], s6 sc0 sc1')
    a('s_waitcnt vmcnt(0)')
    a('v_mov_b32 v2, 0')
    a('ds_write_b32 v2, v1')
    a('s_waitcnt lgkmcnt(0)')
    a('s_mov_b64 exec, -1')
    a('s_branch L_rank_wait')
    a.label('L_touch')
    if True:
        a('s_nop 8')
        a('s_mov_b32 m0, 0x3400')
        a('v_and_b32 v1, 63, v0'); a('v_lshlrev_b32 v1, 21, v1')
        a('s_cmp_eq_u32 s3, 1'); a('s_cbranch_scc0 L_touch2')
        if codepf:
            a('s_getpc_b64 s[74:75]')
            a.label('L_pc0')
            a('v_and_b32 v3, 63, v0'); a('v_lshlrev_b32 v3, 7, v3')
            for k in range(codepf):
                a('v_min_u32 v4, L_end-L_pc0, v3')
                a('global_load_lds_dword v4, s[74:75]')
                if k < codepf - 1: a('v_add_u32 v3, 0x2000, v3')
        if touch: a('s_mov_b32 exec_hi, 0xffff'); a('buffer_load_dword v1, s[8:11], 0 offen lds'); a('s_mov_b64 exec, -1')
        a('s_branch L_rank_wait')
        a.label('L_touch2')
        a('s_mov_b64 exec, 3')
        a('s_cmp_eq_u32 s3, 2'); a('s_cbranch_scc0 L_touch3')
        for p, sz in ((52, 4 << 20), (54, 4 << 20), (56, 4 << 20), (58, 4 << 20), (50, 8192)):
            if touch: srd(a, 12, p, p + 1, sz); a('buffer_load_dword v1, s[12:15], 0 offen lds')
        a('s_mov_b64 exec, -1')
        a('s_branch L_rank_wait')
        a.label('L_touch3')
        a('s_cmp_eq_u32 s2, 0'); a('s_cbranch_scc0 L_touch4')
        a(f's_mov_b32 s20, {F_EPOCH:#x}')
        a('buffer_load_dword v2, off, s[8:11], s20 sc1')
        a('s_waitcnt vmcnt(0)')
        a('v_add_u32 v2, 1, v2'); a('v_lshlrev_b32 v3, 8, v2'); a('v_or_b32 v3, 0x80, v3')
        a(f'buffer_store_dword v3, off, s[16:19], 0 offset:{DBG_NONCE} sc1')
        a('buffer_store_dword v2, off, s[8:11], s20 sc1')
        a.label('L_touch4')
        for p, sz in ((48, 2 << 20), (70, 512 * 6144), (68, 1024), (64, 512 * 3584), (66, 1792 * 1024), (72, 2 << 20)):
            if touch: srd(a, 12, p, p + 1, sz); a('buffer_load_dword v1, s[12:15], 0 offen lds')
        a('s_mov_b64 exec, -1')
    a.label('L_rank_wait')
    a('s_barrier')
    a('v_mov_b32 v2, 0')
    a('ds_read_b32 v1, v2')
    a('s_waitcnt lgkmcnt(0)')
    a('v_readfirstlane_b32 s4, v1')
    a('s_barrier')
    a('s_cmp_ge_u32 s4, 32')
    a('s_cbranch_scc1 L_fail')

def epilogue(a, timing=False):
    a.label('L_fail')
    a('v_mov_b32 v1, 1')
    a('s_mov_b64 exec, 1')
    a(f'buffer_atomic_add v1, off, s[16:19], 0 offset:{DBG_ERR} sc1')
    a.label('L_done')
    if timing:
        a('s_mov_b64 exec, -1')
        a('s_memtime s[98:99]'); a('s_memrealtime s[96:97]')
        a('s_waitcnt lgkmcnt(0)')
        a('v_mov_b32 v0, s78'); a('v_mov_b32 v1, s76'); a('v_mov_b32 v2, s98'); a('v_mov_b32 v3, s96')
        a('v_mov_b32 v4, s94')
        for k in range(7): a(f'v_mov_b32 v{5+k}, s{80+2*k}')
        a('s_lshl_b32 s20, s5, 5'); a('s_add_u32 s20, s20, s4'); a('s_lshl_b32 s20, s20, 6'); a(f's_add_u32 s20, s20, {WS_STAMP + 0x20000:#x}')
        a('s_cmp_eq_u32 s3, 0'); a('s_cbranch_scc0 L_end')
        for k in range(3): a(f'buffer_store_dwordx4 v[{4*k}:{4*k+3}], off, s[8:11], s20 offset:{16*k}')
    a('s_waitcnt vmcnt(0)')
    a.label('L_end')
    a('s_endpgm')
DBG_GRP = 176

TIMING = [False]
def tmark(a, k):
    if TIMING[0]:
        a(f's_memtime s[{80+2*k}:{81+2*k}]'); a('s_waitcnt lgkmcnt(0)')

F_LN1 = WS_FLAG + 0x1000
F_GRP = WS_FLAG + 0x2000
F_EPOCH = WS_FLAG + 0x3000
S_N = 7
N_ATT = 3

def get_nonce(a, vt, ss, fail):
    L = a.newlabel('L_gn'); L2 = a.newlabel('L_go')
    a(f's_mov_b32 s{ss}, 0')
    a.label(L)
    a(f'buffer_load_dword v{vt}, off, s[16:19], 0 offset:{DBG_NONCE} sc1')
    a(f's_add_u32 s{ss}, s{ss}, 1'); a(f's_cmp_gt_u32 s{ss}, {SPIN_MAX}'); a(f's_cbranch_scc1 {fail}')
    a('s_waitcnt vmcnt(0)')
    a(f'v_readfirstlane_b32 s{S_N}, v{vt}')
    a(f's_cmp_lg_u32 s{S_N}, 0')
    a(f's_cbranch_scc1 {L2}')
    a('s_sleep 4')
    a(f's_branch {L}')
    a.label(L2)
```

```python
from common import *
from chain import mf32, mf16, cvt

S_W, S_R, S_X = 3, 4, 5
WS, TS, DB = 8, 12, 16
sw32 = lambda x, y: f'v_permlane32_swap_b32 v{x}, v{y}'
sw16 = lambda x, y: f'v_permlane16_swap_b32 v{x}, v{y}'
LOG2E = 1.4426950408889634

LOOPMARK = [False]
def lmark(a, k):
    if LOOPMARK[0]: tmark(a, k)

FM = [False]
def fmark(a, k):
    if FM[0]: tmark(a, k)
def omark(a, k):
    if not FM[0]: tmark(a, k)

def spin(a, s, fail):
    a(f's_add_u32 s{s}, s{s}, 1')
    a(f's_cmp_gt_u32 s{s}, {SPIN_MAX}')
    a(f's_cbranch_scc1 {fail}')

def set_flag(a, s_off, vt, val=None):
    L = a.newlabel('L_sf')
    a(f's_cmp_eq_u32 s{S_W}, 0')
    a(f's_cbranch_scc0 {L}')
    a(f'v_mov_b32 v{vt}, s{S_N if val is None else val}')
    a('s_mov_b64 exec, 1')
    a(f'buffer_store_dword v{vt}, off, s[{WS}:{WS+3}], s{s_off} sc1')
    a('s_mov_b64 exec, -1')
    a.label(L)

def wait_flags(a, vt, st, ss, fail, ln1=True, grp=True, sleep=6):
    L = a.newlabel('L_wf'); L2 = a.newlabel('L_wg'); L3 = a.newlabel('L_wh')
    a(f's_cmp_eq_u32 s{S_W}, 0')
    a(f's_cbranch_scc0 {L2}')
    a(f's_mov_b32 s{ss}, 0')
    a(f'v_mbcnt_lo_u32_b32 v{vt}, -1, 0'); a(f'v_mbcnt_hi_u32_b32 v{vt}, -1, v{vt}')
    a(f'v_lshlrev_b32 v{vt}, 2, v{vt}'); a(f'v_and_b32 v{vt+1}, 127, v{vt}')
    a.label(L)
    for k in range(2, 5): a(f'v_mov_b32 v{vt+k}, s{S_N}')
    if ln1:
        a(f's_mov_b32 s{st}, {F_LN1:#x}')
        a(f'buffer_load_dword v{vt+2}, v{vt}, s[{WS}:{WS+3}], s{st} offen sc1')
        a(f'buffer_load_dword v{vt+3}, v{vt}, s[{WS}:{WS+3}], s{st} offen offset:256 sc1')
    if grp:
        a(f's_lshl_b32 s{st}, s{S_X}, 7'); a(f's_add_u32 s{st}, s{st}, {F_GRP:#x}')
        a(f'buffer_load_dword v{vt+4}, v{vt+1}, s[{WS}:{WS+3}], s{st} offen sc1')
    spin(a, ss, fail)
    a('s_waitcnt vmcnt(0)')
    a(f'v_bitop3_b32 v{vt+2}, v{vt+2}, v{vt+3}, s{S_N} bitop3:0x7e')
    a(f'v_bitop3_b32 v{vt+2}, v{vt+2}, v{vt+4}, s{S_N} bitop3:0xf6')
    a(f'v_cmp_ne_u32 vcc, 0, v{vt+2}')
    a(f's_cbranch_vccz {L3}')
    a(f's_sleep {sleep}')
    a(f's_branch {L}')
    a.label(L3)
    a.label(L2)
    a('s_barrier')

def gate(a, kind, vt, st, ss, fail, sleep=10):
    L = a.newlabel('L_ga'); L2 = a.newlabel('L_gb'); L3 = a.newlabel('L_gc')
    a(f's_cmp_eq_u32 s{S_W}, 0')
    a(f's_cbranch_scc0 {L2}')
    a(f's_mov_b32 s{ss}, 0')
    if kind == 'mod':
        a(f'v_mbcnt_lo_u32_b32 v{vt}, -1, 0'); a(f'v_mbcnt_hi_u32_b32 v{vt}, -1, v{vt}'); a(f'v_lshlrev_b32 v{vt}, 7, v{vt}')
        a(f's_mov_b32 s{st}, {WS_MOD + 4}')
    else:
        a(f'v_mov_b32 v{vt}, 0')
        a(f's_lshl_b32 s{st}, s{S_R}, 7'); a(f's_add_u32 s{st}, s{st}, {WS_FLAG:#x}')
    a.label(L)
    a(f'buffer_load_dword v{vt+1}, v{vt}, s[{WS}:{WS+3}], s{st} offen sc1')
    spin(a, ss, fail)
    a('s_waitcnt vmcnt(0)')
    a(f'v_subrev_u32 v{vt+1}, s{S_N}, v{vt+1}')
    a(f'v_cmp_lt_u32 vcc, {0 if kind == "mod" else 64}, v{vt+1}')
    a(f's_cbranch_vccz {L3}')
    a(f's_sleep {sleep}')
    a(f's_branch {L}')
    a.label(L3)
    a.label(L2)
    a('s_barrier')

GATE = [True, True]
FD = [3, 3]
def grp_flag(a, st, vt):
    a(f's_lshl_b32 s{st}, s{S_X}, 5'); a(f's_add_u32 s{st}, s{st}, s{S_R}'); a(f's_lshl_b32 s{st}, s{st}, 2'); a(f's_add_u32 s{st}, s{st}, {F_GRP:#x}')
    set_flag(a, st, vt)

def unpack(a, d_lo, d_hi, s):
    a(f'v_lshlrev_b32 v{d_lo}, 16, v{s}')
    a(f'v_and_b32 v{d_hi}, 0xffff0000, v{s}')

def rbf(a, d, s):
    a(f'v_cvt_pk_bf16_f32 v{d}, v{s}, v{s}')
    a(f'v_lshlrev_b32 v{d}, 16, v{d}')

def group_sum(a, x, t):
    a(f'v_mov_b32 v{t}, v{x}'); a(sw32(x, t)); a(f'v_add_f32 v{x}, v{x}, v{t}')
    a(f'v_mov_b32 v{t}, v{x}'); a(sw16(x, t)); a(f'v_add_f32 v{x}, v{x}, v{t}')

def silu(a, x, t, s_nl2e):
    a(f'v_mul_f32 v{t}, s{s_nl2e}, v{x}')
    a(f'v_exp_f32 v{t}, v{t}')
    a(f'v_add_f32 v{t}, 1.0, v{t}')
    a(f'v_rcp_f32 v{t}, v{t}')
    a(f'v_mul_f32 v{x}, v{x}, v{t}')

def gen_front(a, fail='L_fail'):
    a.comment('================= front work: mod + LN1 =================')
    tmark(a, 0)
    SC, T0, T1, SP, NL = 20, 21, 22, 23, 24
    PX, PC, PM, PM0 = 60, 62, 64, 66
    a(f's_load_dwordx4 s[{60}:{63}], s[0:1], {KA["x"]}')
    a(f's_load_dwordx4 s[{64}:{67}], s[0:1], {KA["c"]}')
    a(f's_sub_u32 s{SC}, s{S_X}, 4'); a(f's_lshl_b32 s{SC}, s{SC}, 5'); a(f's_add_u32 s{SC}, s{SC}, s{S_R}')
    a(f's_mov_b32 s{NL}, {f32bits(-LOG2E):#x}')
    ln, g, c, L16 = 1, 2, 3, 4
    a(f'v_and_b32 v{ln}, 63, v0'); a(f'v_lshrrev_b32 v{g}, 4, v{ln}'); a(f'v_and_b32 v{c}, 15, v{ln}'); a(f'v_lshlrev_b32 v{L16}, 4, v{ln}')
    a(f'v_lshlrev_b32 v5, 10, v{c}'); a(f'v_lshl_add_u32 v5, v{g}, 4, v5')
    a(f's_lshl_b32 s{T0}, s{SC}, 14'); a(f's_lshl_b32 s{T1}, s{S_W}, 8'); a(f's_add_u32 s{T0}, s{T0}, s{T1}')
    a('s_waitcnt lgkmcnt(0)')
    srd(a, TS, 60, 61, 2 << 20)
    XR = 16
    for i in range(4): a(f'buffer_load_dwordx4 {vr(XR+4*i,4)}, v5, s[{TS}:{TS+3}], s{T0} offen offset:{64*i}')
    Lnomod = a.newlabel('L_nomod')
    a(f's_cmp_ge_u32 s{SC}, {N_MOD}')
    a(f's_cbranch_scc1 {Lnomod}')
    srd(a, 28, 64, 65, 1024); srd(a, 32, 66, 67, 512 * 6144)
    a('v_lshrrev_b32 v6, 2, v0'); a('v_lshlrev_b32 v7, 1, v6')
    CR, WR, AC = 32, 40, 72
    for i in range(8): a(f'buffer_load_ushort v{CR+i}, v7, s[28:31], 0 offen offset:{128*i}')
    a(f's_mov_b32 s{T0}, 6144'); a(f'v_mul_lo_u32 v8, v6, s{T0}'); a('v_and_b32 v9, 3, v0'); a('v_lshl_add_u32 v8, v9, 4, v8')
    a(f's_lshl_b32 s{T0}, s{SC}, 6')
    for i in range(8):
        a(f'buffer_load_dwordx4 {vr(WR+4*i,4)}, v8, s[32:35], s{T0} offen')
        if i < 7: a(f's_add_u32 s{T0}, s{T0}, {64*6144}')
    a('s_waitcnt vmcnt(8)')
    tmark(a, 1)
    for i in range(8):
        a(f'v_lshlrev_b32 v{CR+i}, 16, v{CR+i}'); silu(a, CR + i, 10, NL); rbf(a, CR + i, CR + i)
    for i in range(8):
        a(f's_waitcnt vmcnt({7-i})')
        for k in range(4):
            unpack(a, 10, 11, WR + 4 * i + k)
            if i == 0:
                a(f'v_mul_f32 v{AC+2*k}, v{CR}, v10'); a(f'v_mul_f32 v{AC+2*k+1}, v{CR}, v11')
            else:
                a(f'v_fmac_f32 v{AC+2*k}, v{CR+i}, v10'); a(f'v_fmac_f32 v{AC+2*k+1}, v{CR+i}, v11')
    fmark(a, 3)
    a('v_lshlrev_b32 v10, 5, v6'); a(f's_mov_b32 s{T0}, 2080'); a(f'v_mad_u32_u24 v10, v9, s{T0}, v10')
    a(f'ds_write_b128 v10, {vr(AC,4)} offset:4096'); a(f'ds_write_b128 v10, {vr(AC+4,4)} offset:4112')
    a('s_waitcnt lgkmcnt(0)'); a('s_barrier')
    a('v_and_b32 v10, 31, v0'); a('v_lshrrev_b32 v11, 5, v0')
    a('v_lshrrev_b32 v12, 3, v10'); a(f'v_mul_u32_u24 v12, 2080, v12'); a('v_and_b32 v13, 7, v10'); a('v_lshl_add_u32 v12, v13, 2, v12')
    a('v_lshl_add_u32 v12, v11, 8, v12')
    for k in range(8): a(f'ds_read_b32 v{AC+k}, v12 offset:{4096 + 32*k}')
    a('s_waitcnt lgkmcnt(0)')
    for k in range(1, 8): a(f'v_add_f32 v{AC}, v{AC}, v{AC+k}')
    a('v_lshlrev_b32 v12, 2, v0')
    a(f'ds_write_b32 v12, v{AC}')
    a('s_waitcnt lgkmcnt(0)'); a('s_barrier')
    a('v_lshlrev_b32 v12, 2, v10')
    for k in range(8): a(f'ds_read_b32 v{AC+k}, v12 offset:{128*k}')
    a('s_waitcnt lgkmcnt(0)')
    for k in range(1, 8): a(f'v_add_f32 v{AC}, v{AC}, v{AC+k}')
    a(f'v_mov_b32_dpp v{AC+1}, v{AC} quad_perm:[1,0,3,2] row_mask:0xf bank_mask:0xf')
    cvt(a, AC, AC, AC + 1)
    fmark(a, 4)
    get_nonce(a, 12, SP, fail)
    fmark(a, 5)
    a(f'v_mov_b32 v{AC+1}, s{S_N}')
    a('v_lshlrev_b32 v12, 2, v10')
    a(f's_lshl_b32 s{T0}, s{SC}, 7'); a(f's_add_u32 s{T0}, s{T0}, {WS_MOD}')
    Lst = a.newlabel('L_ms')
    a(f's_cmp_eq_u32 s{S_W}, 0'); a(f's_cbranch_scc0 {Lst}')
    a('s_mov_b32 exec_lo, 0x55555555'); a('s_mov_b32 exec_hi, 0')
    a(f'buffer_store_dwordx2 {vr(AC,2)}, v12, s[{WS}:{WS+3}], s{T0} offen sc1')
    a('s_mov_b64 exec, -1')
    a.label(Lst)
    tmark(a, 2)
    a.label(Lnomod)
    a(f'v_mov_b32 v40, {SENT:#x}')
    for k in range(1, 4): a(f'v_mov_b32 v{40+k}, v40')
    a(f's_lshl_b32 s{T0}, s{SC}, 14'); a(f's_lshl_b32 s{T1}, s{S_W}, 12'); a(f's_add_u32 s{T0}, s{T0}, s{T1}')
    a(f's_add_u32 s{T1}, s{T0}, {WS_X1:#x}'); a(f's_add_u32 s{T0}, s{T0}, {WS_H2:#x}')
    for k in range(4):
        a(f'buffer_store_dwordx4 v[40:43], v{L16}, s[{WS}:{WS+3}], s{T1} offen offset:{1024*k} sc1')
    Lm0 = a.newlabel('L_m0')
    a(f's_cmp_ge_u32 s{SC}, 2'); a(f's_cbranch_scc1 {Lm0}')
    srd(a, 28, 62, 63, 8192)
    a(f'v_and_b32 v10, 7, v{ln}'); a('v_lshlrev_b32 v10, 10, v10'); a(f'v_lshl_add_u32 v10, v{g}, 5, v10')
    a(f'v_bfe_u32 v11, v{ln}, 3, 1'); a('v_lshl_add_u32 v10, v11, 4, v10')
    a(f's_lshl_b32 s{T0}, s{SC}, 9'); a(f's_lshl_b32 s{T1}, s{S_W}, 7'); a(f's_add_u32 s{T0}, s{T0}, s{T1}')
    a(f'buffer_load_dwordx4 v[40:43], v10, s[28:31], s{T0} offen')
    a('s_waitcnt vmcnt(0)')
    a.label(Lm0)
    a(f's_lshl_b32 s{T0}, s{SC}, 12'); a(f's_lshl_b32 s{T1}, s{S_W}, 10'); a(f's_add_u32 s{T0}, s{T0}, s{T1}'); a(f's_add_u32 s{T0}, s{T0}, {WS_MEMG:#x}')
    a(f'buffer_store_dwordx4 v[40:43], v{L16}, s[{WS}:{WS+3}], s{T0} offen sc1')
    XF = 80
    a('s_waitcnt vmcnt(5)')
    for k in range(16): unpack(a, XF + 2 * k, XF + 2 * k + 1, XR + k)
    a(f'v_add_f32 v10, v{XF}, v{XF+1}')
    for k in range(2, 32): a(f'v_add_f32 v10, v10, v{XF+k}')
    group_sum(a, 10, 11)
    LB = 12544
    a(f's_lshl_b32 s{T0}, s{S_W}, 6'); a(f'v_lshlrev_b32 v12, 2, v{c}'); a(f'v_add_u32 v13, s{T0}, v12')
    a(f'ds_write_b32 v13, v10 offset:{LB}')
    a('s_waitcnt lgkmcnt(0)'); a('s_barrier')
    for k in range(4): a(f'ds_read_b32 v{44+k}, v12 offset:{LB + 64*k}')
    a('s_waitcnt lgkmcnt(0)')
    a('v_add_f32 v44, v44, v45'); a('v_add_f32 v46, v46, v47'); a('v_add_f32 v44, v44, v46')
    a(f'v_mul_f32 v44, {f32bits(1/512):#x}, v44')
    for k in range(32): a(f'v_sub_f32 v{XF+k}, v{XF+k}, v44')
    a(f'v_mul_f32 v10, v{XF}, v{XF}')
    for k in range(1, 32): a(f'v_fmac_f32 v10, v{XF+k}, v{XF+k}')
    group_sum(a, 10, 11)
    a(f'ds_write_b32 v13, v10 offset:{LB+256}')
    a('s_waitcnt lgkmcnt(0)'); a('s_barrier')
    for k in range(4): a(f'ds_read_b32 v{44+k}, v12 offset:{LB + 256 + 64*k}')
    a('s_waitcnt lgkmcnt(0)')
    a('v_add_f32 v44, v44, v45'); a('v_add_f32 v46, v46, v47'); a('v_add_f32 v44, v44, v46')
    a(f'v_mov_b32 v45, {f32bits(1e-5):#x}')
    a(f'v_fmac_f32 v45, {f32bits(1/512):#x}, v44')
    a('v_rsq_f32 v45, v45')
    omark(a, 3)
    for k in range(32): a(f'v_mul_f32 v{XF+k}, v{XF+k}, v45')
    get_nonce(a, 10, SP, fail)
    MS, MC = 112, 144
    a(f'v_lshlrev_b32 v10, 5, v{g}')
    a(f's_lshl_b32 s{T0}, s{S_W}, 9'); a(f's_add_u32 s{T0}, s{T0}, {WS_MOD}')
    Lm = a.newlabel('L_lm'); Lm2 = a.newlabel('L_ln')
    a(f's_mov_b32 s{SP}, 0')
    a.label(Lm)
    for i in range(4):
        for hh in range(2):
            a(f'buffer_load_dwordx4 {vr(MS+8*i+4*hh,4)}, v10, s[{WS}:{WS+3}], s{T0} offen offset:{128*i+16*hh} sc1')
            a(f'buffer_load_dwordx4 {vr(MC+8*i+4*hh,4)}, v10, s[{WS}:{WS+3}], s{T0} offen offset:{2048+128*i+16*hh} sc1')
    spin(a, SP, fail)
    a('s_waitcnt vmcnt(0)')
    a(f'v_xor_b32 v11, s{S_N}, v{MS+1}')
    for k in range(1, 32): a(f'v_bitop3_b32 v11, v11, v{MS+2*k+1}, s{S_N} bitop3:0xf6')
    a('v_cmp_ne_u32 vcc, 0, v11')
    a(f's_cbranch_vccz {Lm2}')
    a('s_sleep 4')
    a(f's_branch {Lm}')
    a.label(Lm2)
    omark(a, 4)
    for k in range(16):
        unpack(a, 10, 11, MC + 2 * k); a('v_add_f32 v10, 1.0, v10'); a('v_add_f32 v11, 1.0, v11')
        unpack(a, 12, 13, MS + 2 * k)
        a(f'v_fma_f32 v12, v{XF+2*k}, v10, v12'); a(f'v_fma_f32 v13, v{XF+2*k+1}, v11, v13')
        cvt(a, XR + k, 12, 13)
    a(f's_lshl_b32 s{T0}, s{SC}, 14'); a(f's_lshl_b32 s{T1}, s{S_W}, 12'); a(f's_add_u32 s{T0}, s{T0}, s{T1}'); a(f's_add_u32 s{T0}, s{T0}, {WS_H1:#x}')
    for i in range(4): a(f'buffer_store_dwordx4 {vr(XR+4*i,4)}, v{L16}, s[{WS}:{WS+3}], s{T0} offen offset:{1024*i} sc1')
    a('s_waitcnt vmcnt(0)'); a('s_barrier')
    omark(a, 5)
    a(f's_lshl_b32 s{T0}, s{SC}, 2'); a(f's_add_u32 s{T0}, s{T0}, {F_LN1:#x}')
    set_flag(a, T0, 10)

class Stager:
    DEPTH = 8
    def __init__(self, a, base, slots):
        self.a, self.base, self.slots = a, base, min(slots, Stager.DEPTH)
        self.units = []
    def add(self, issue, read): self.units.append((issue, read))
    def run(self, vm=None, mid=None):
        a = self.a; vm = vm or VmTrack()
        n = len(self.units); nxt = 0
        def iss():
            nonlocal nxt
            self.units[nxt][0](self.base + (nxt % self.slots) * 16384)
            for _ in range(4): vm.add(('u', nxt))
            nxt += 1
        while nxt < min(n, self.slots): iss()
        for i in range(n):
            a(f's_waitcnt vmcnt({min(63, vm.after(("u", i)))}) lgkmcnt(0)')
            a('s_barrier')
            if i > 0 and nxt < n: iss()
            if mid: mid(i, vm)
            self.units[i][1](self.base + (i % self.slots) * 16384)
        a('s_waitcnt lgkmcnt(0)')
        a('s_barrier')

def dma4(a, vregs, srd_, s_off, step, lds, s_m, wave_lds=4096):
    a(f's_lshl_b32 s{s_m}, s{S_W}, 12'); a(f's_add_u32 s{s_m}, s{s_m}, {lds}')
    for i in range(4):
        a(f's_mov_b32 m0, s{s_m}')
        if i < 3: a(f's_add_u32 s{s_m}, s{s_m}, 1024')
        a(f'buffer_load_dwordx4 v{vregs[i]}, s[{srd_}:{srd_+3}], s{s_off} offen lds')
        if i < 3: a(f's_add_u32 s{s_off}, s{s_off}, {step}')

def tr(a, kind, b, addr, off, tmp):
    if off < 65536: a(f'ds_read_b64_tr_b16 {kind}[{b}:{b+1}], v{addr} offset:{off}')
    else:
        hi = off & ~0x7fff
        a(f'v_add_u32 v{tmp}, {hi}, v{addr}')
        a(f'ds_read_b64_tr_b16 {kind}[{b}:{b+1}], v{tmp} offset:{off-hi}')

def lane_parts(a, ln, g, c, rp, cp):
    a(f'v_and_b32 v{ln}, 63, v0'); a(f'v_lshrrev_b32 v{g}, 4, v{ln}'); a(f'v_and_b32 v{c}, 15, v{ln}')
    a(f'v_lshrrev_b32 v{rp}, 2, v{c}'); a(f'v_and_b32 v{cp}, 3, v{c}')

def gen_qkv(a, fail='L_fail', done='L_done'):
    a.comment('================= QKV role =================')
    T0, T1, SP, SO, SM, SEG, SDST, SSRC, SFL, CS, SQD, SD2 = range(20, 32)
    a(f's_lshl_b32 s{T0}, s{S_X}, 3'); a(f's_add_u32 s{T0}, s{T0}, 16')
    a(f's_load_dwordx2 s[60:61], s[0:1], s{T0}')
    a(f's_load_dwordx2 s[62:63], s[0:1], {KA["Wq"]}')
    ln, g, c, rp, cp, L16 = 1, 2, 3, 4, 5, 6
    lane_parts(a, ln, g, c, rp, cp); a(f'v_lshlrev_b32 v{L16}, 4, v{ln}')
    for hv in range(2):
        a(f'v_or_b32 v10, {hv<<2}, v{g}'); a('v_lshlrev_b32 v10, 1, v10'); a(f'v_xor_b32 v10, v10, v{c}')
        a('v_lshlrev_b32 v10, 4, v10'); a(f'v_lshl_add_u32 v{8+hv}, v{g}, 13, v10')
    a(f'v_lshl_add_u32 v10, v{g}, 3, v{rp}'); a(f'v_and_b32 v11, 1, v{g}'); a(f'v_lshl_add_u32 v11, v11, 2, v{rp}')
    a(f's_lshl_b32 s{T0}, s{S_W}, 1'); a(f'v_xor_b32 v11, s{T0}, v11'); a('v_lshlrev_b32 v11, 5, v11')
    a('v_lshl_add_u32 v11, v10, 8, v11'); a(f'v_lshl_add_u32 v12, v{cp}, 3, v11'); a('v_xor_b32 v13, 32, v12')
    for hv in range(2):
        a(f'v_bfe_u32 v16, v{ln}, 4, 1'); a(f'v_or_b32 v16, {hv<<1}, v16'); a('v_lshlrev_b32 v16, 1, v16')
        a(f'v_and_b32 v17, 7, v{ln}'); a('v_xor_b32 v16, v16, v17'); a('v_lshlrev_b32 v16, 4, v16')
        a(f'v_lshrrev_b32 v17, 3, v{ln}'); a(f'v_lshl_add_u32 v{18+hv}, v17, 13, v16')
    a(f'v_lshrrev_b32 v16, 1, v{rp}'); a(f'v_and_b32 v17, 1, v{g}'); a('v_lshl_add_u32 v16, v17, 1, v16')
    a(f's_and_b32 s{T0}, s{S_W}, 1'); a(f's_lshl_b32 s{T0}, s{T0}, 1')
    a(f'v_xor_b32 v16, s{T0}, v16'); a('v_lshlrev_b32 v16, 5, v16'); a('v_lshl_add_u32 v16, v10, 7, v16'); a(f'v_lshl_add_u32 v20, v{cp}, 3, v16'); a('v_xor_b32 v21, 32, v20')
    a('s_waitcnt lgkmcnt(0)')
    srd(a, TS, 60, 61, 4 << 20)
    get_nonce(a, 22, SP, fail)
    if GATE[0]: gate(a, 'mod', 22, T0, SP, fail)
    st = Stager(a, 0, 8)
    for un in range(8):
        def issue(lds, un=un):
            a(f's_lshl_b32 s{SO}, s{S_W}, 17'); a(f's_lshl_b32 s{T0}, s{S_R}, 8'); a(f's_add_u32 s{SO}, s{SO}, s{T0}'); a(f's_add_u32 s{SO}, s{SO}, {un*64*8192:#x}')
            dma4(a, (8, 8, 9, 9), TS, SO, 4 * 8192, lds, SM)
        def read(lds, un=un):
            for k2 in range(2):
                for u in range(2):
                    for x in range(2):
                        tr(a, 'a', ((un * 2 + k2) * 2 + u) * 4 + 2 * x, 12 + u, lds + (32 * k2 + 4 * x) * 256, 14)
        st.add(issue, read)
    for un in range(4):
        def issue(lds, un=un):
            if un == 0: srd(a, TS, 62, 63, 4 << 20)
            a(f's_lshl_b32 s{SO}, s{S_W}, 18'); a(f's_lshl_b32 s{T0}, s{S_R}, 8'); a(f's_add_u32 s{SO}, s{SO}, s{T0}')
            a(f's_sub_u32 s{T0}, s{S_X}, 1'); a(f's_lshl_b32 s{T0}, s{T0}, 7'); a(f's_add_u32 s{SO}, s{SO}, s{T0}'); a(f's_add_u32 s{SO}, s{SO}, {un*128*8192:#x}')
            dma4(a, (18, 19, 18, 19), TS, SO, 8 * 8192, lds, SM)
        def read(lds, un=un):
            for k4 in range(4):
                for u in range(2):
                    for x in range(2):
                        tr(a, 'a', 128 + ((un * 4 + k4) * 2 + u) * 4 + 2 * x, 20 + u, lds + (32 * k4 + 4 * x) * 128, 14)
        st.add(issue, read)
    st.run()
    tmark(a, 0)
    wait_flags(a, 16, T0, SP, fail, grp=False)
    tmark(a, 1)
    a(f's_lshl_b32 s{SDST}, s{S_R}, 15'); a(f's_add_u32 s{SDST}, s{SDST}, {WS_QKV:#x}')
    a(f's_lshr_b32 s{T0}, s{S_W}, 1'); a(f's_lshl_b32 s{T0}, s{T0}, 12')
    a(f's_sub_u32 s{T1}, s{S_X}, 1'); a(f's_lshl_b32 s{T1}, s{T1}, 11'); a(f's_add_u32 s{SQD}, s{SDST}, s{T1}'); a(f's_add_u32 s{SQD}, s{SQD}, s{T0}')
    a(f's_and_b32 s{T1}, s{S_W}, 1'); a(f's_lshl_b32 s{T1}, s{T1}, 10'); a(f's_add_u32 s{SQD}, s{SQD}, s{T1}')
    a(f's_lshl_b32 s{T1}, s{S_X}, 13'); a(f's_add_u32 s{SDST}, s{SDST}, s{T1}')
    a(f's_lshl_b32 s{T0}, s{T0}, 2'); a(f'v_add_u32 v15, s{T0}, v{L16}'); a('v_xor_b32 v7, 0x4000, v15')
    a(f's_sub_u32 s{T0}, s{S_X}, 1'); a(f's_lshl_b32 s{T0}, s{T0}, 4'); a(f's_lshl_b32 s{SFL}, s{S_R}, 7'); a(f's_add_u32 s{SFL}, s{SFL}, s{T0}'); a(f's_add_u32 s{SFL}, s{SFL}, {WS_FLAG:#x}')
    a(f's_mov_b32 s{CS}, {f32bits(SCALE_LOG2E):#x}')
    a(f's_lshl_b32 s{SSRC}, s{S_W}, 13'); a(f's_add_u32 s{SSRC}, s{SSRC}, {WS_H1:#x}')
    a(f's_lshl_b32 s{SM}, s{S_W}, 13')
    def h_dma():
        a(f's_add_u32 s{T0}, s{SSRC}, 4096'); a(f's_add_u32 s{T1}, s{SM}, 4096')
        a(f's_mov_b32 m0, s{SM}')
        for i in range(4): a(f'buffer_load_dwordx4 v{L16}, s[{WS}:{WS+3}], s{SSRC} offen offset:{1024*i} sc1 lds')
        a(f's_mov_b32 m0, s{T1}')
        for i in range(4): a(f'buffer_load_dwordx4 v{L16}, s[{WS}:{WS+3}], s{T0} offen offset:{1024*i} sc1 lds')
        a(f's_add_u32 s{SSRC}, s{SSRC}, 0x8000'); a(f's_add_u32 s{SM}, s{SM}, 0x8000'); a(f's_and_b32 s{SM}, s{SM}, 0x1ffff')
    STO = 32
    a(f's_lshl_b32 s{STO}, s{S_R}, 10'); a(f's_lshl_b32 s{T0}, s{S_W}, 15'); a(f's_add_u32 s{STO}, s{STO}, s{T0}'); a(f's_add_u32 s{STO}, s{STO}, {WS_H1:#x}')
    a(f'buffer_load_dwordx4 v[40:43], v{L16}, s[{WS}:{WS+3}], s{STO} offen sc1'); a(f's_add_u32 s{STO}, s{STO}, 0x20000')
    a(f'buffer_load_dwordx4 v[44:47], v{L16}, s[{WS}:{WS+3}], s{STO} offen sc1'); a(f's_add_u32 s{STO}, s{STO}, 0x20000')
    a('s_waitcnt vmcnt(1)'); a('s_barrier')
    for _ in range(3): h_dma()
    a(f's_mov_b32 s{SEG}, 0')
    Lv = a.newlabel('L_qv')
    a(f's_cmp_eq_u32 s{S_X}, 2'); a(f's_cbranch_scc1 {Lv}')
    AC, AQ_, HF, PK = 16, 32, 40, 104
    for isv in (False, True):
        if isv:
            a.label(Lv)
            a(f's_lshl_b32 s{T0}, s{S_W}, 11'); a(f's_add_u32 s{SDST}, s{SDST}, s{T0}'); a(f's_add_u32 s{SD2}, s{SDST}, 1024')
        else:
            a(f's_lshl_b32 s{T0}, s{S_W}, 10'); a(f's_add_u32 s{SDST}, s{SDST}, s{T0}')
            a(f's_lshr_b32 s{T0}, s{S_W}, 1'); a(f's_lshl_b32 s{T0}, s{T0}, 12'); a(f's_add_u32 s{SDST}, s{SDST}, s{T0}'); a(f's_xor_b32 s{SD2}, s{SDST}, 4096')
        Lp = a.newlabel('L_ql'); Lnf = a.newlabel('L_qnf')
        a(f's_waitcnt vmcnt(16)')
        a.label(Lp)
        a('s_barrier')
        lmark(a, 2)
        a(f's_cmp_eq_u32 s{S_W}, 0'); a(f's_cbranch_scc0 {Lnf}')
        a(f's_max_i32 s{T0}, s{SEG}, 1'); a(f's_sub_u32 s{T0}, s{T0}, 1'); a(f's_add_u32 s{T0}, s{T0}, s{S_N}'); a(f'v_mov_b32 v10, s{T0}')
        a('s_mov_b64 exec, 1'); a(f'buffer_store_dword v10, off, s[{WS}:{WS+3}], s{SFL} sc1'); a('s_mov_b64 exec, -1')
        a.label(Lnf)
        order = [(ks, oo) for ks in range(16) for oo in range(2)]
        def rd(i):
            ks, oo = order[i]
            a(f'ds_read_b128 {vr(HF + 4*(i % 16), 4)}, v{15 if oo == 0 else 7} offset:{ks*1024}')
        for i in range(4): rd(i)
        h_dma()
        Lto = a.newlabel('L_qt')
        a(f's_and_b32 s{T0}, s{SEG}, 3'); a(f's_cbranch_scc1 {Lto}')
        a(f'buffer_load_dwordx4 v[116:119], v{L16}, s[{WS}:{WS+3}], s{STO} offen sc1'); a(f's_add_u32 s{STO}, s{STO}, 0x20000')
        a.label(Lto)
        lmark(a, 3)
        for i in range(4, 8): rd(i)
        for i, (ks, oo) in enumerate(order):
            a(f's_waitcnt lgkmcnt({min(7, 31 - i)})')
            H = vr(HF + 4 * (i % 16), 4)
            for u in range(2):
                W = f'a[{(ks*2+u)*4}:{(ks*2+u)*4+3}]'
                D = vr(AC + (4 * (2 * oo + u) if not isv else 4 * (2 * u + oo)), 4)
                A_, B_ = (H, W) if isv else (W, H)
                a(f'v_mfma_f32_16x16x32_bf16 {D}, {A_}, {B_}, {"0" if ks == 0 else D}')
                if u == 0 and i + 8 < 32: rd(i + 8)
            if oo == 0:
                for u in range(2):
                    D = vr(AQ_ + 4 * u, 4)
                    a(f'v_mfma_f32_16x16x32_bf16 {D}, a[{128+(ks*2+u)*4}:{128+(ks*2+u)*4+3}], {H}, {"0" if ks == 0 else D}')
        lmark(a, 4)
        a('v_add_u32 v15, 0x8000, v15'); a('v_and_b32 v15, 0x1ffff, v15'); a('v_xor_b32 v7, 0x4000, v15')
        for k in range(4): cvt(a, PK + 8 + k, AQ_ + 2 * k, AQ_ + 2 * k + 1)
        a(f'buffer_store_dwordx4 {vr(PK+8,4)}, v{L16}, s[{WS}:{WS+3}], s{SQD} offen sc1')
        if not isv:
            for k in range(16): a(f'v_mul_f32 v{AC+k}, s{CS}, v{AC+k}')
        for k in range(8): cvt(a, PK + k, AC + 2 * k, AC + 2 * k + 1)
        if isv:
            Ls = a.newlabel('L_qs')
            a(f's_cmp_lt_u32 s{S_W}, 2'); a(f's_cbranch_scc1 {Ls}')
            for u in range(2):
                for k in range(2): a(f'v_swap_b32 v{PK+4*u+k}, v{PK+4*u+2+k}')
            a.label(Ls)
        a(f'buffer_store_dwordx4 {vr(PK,4)}, v{L16}, s[{WS}:{WS+3}], s{SDST} offen sc1')
        a(f'buffer_store_dwordx4 {vr(PK+4,4)}, v{L16}, s[{WS}:{WS+3}], s{SD2} offen sc1')
        lmark(a, 5)
        a(f's_add_u32 s{SDST}, s{SDST}, 0x100000'); a(f's_add_u32 s{SD2}, s{SD2}, 0x100000'); a(f's_add_u32 s{SQD}, s{SQD}, 0x100000')
        a(f's_add_u32 s{SEG}, s{SEG}, 1')
        a(f's_cmp_lt_u32 s{SEG}, 64')
        a('s_waitcnt vmcnt(11)')
        a(f's_cbranch_scc1 {Lp}')
        a('s_waitcnt vmcnt(0)'); a('s_barrier')
        a(f's_add_u32 s{T0}, s{S_N}, 64')
        set_flag(a, SFL, 10, T0)
        a(f's_branch {done}')

def make_selector(a, ln, dst, t1, t2, t3):
    a(f'v_and_b32 v{t1}, 7, v{ln}'); a(f'v_and_b32 v{t2}, 1, v{ln}'); a(f'v_lshlrev_b32 v{t2}, 4, v{t2}')
    a(f'v_mov_b32 v{t3}, 0x3f80'); a(f'v_lshlrev_b32 v{t3}, v{t2}, v{t3}'); a(f'v_lshrrev_b32 v{t1}, 1, v{t1}')
    for r in range(4):
        a(f'v_cmp_eq_u32 vcc, {r}, v{t1}'); a(f'v_cndmask_b32 v{dst+r}, 0, v{t3}, vcc')

def row_addrs(a, g, c, PSA, RLA, RO, t, sh=15):
    a(f'v_lshlrev_b32 v{t}, 4, v{g}'); a(f'v_lshl_add_u32 v{PSA}, v{c}, {sh}, v{t}')
    a(f'v_lshlrev_b32 v{t}, 4, v{c}'); a(f'v_lshl_add_u32 v{RLA}, v{g}, 10, v{t}')
    a(f'v_lshrrev_b32 v{t}, 2, v{c}'); a(f'v_lshlrev_b32 v{RO}, 6, v{t}')
    a(f'v_and_b32 v{t}, 1, v{g}'); a(f'v_lshl_add_u32 v{RO}, v{t}, 5, v{RO}')
    a(f'v_and_b32 v{t}, 3, v{c}'); a(f'v_lshl_add_u32 v{RO}, v{t}, 3, v{RO}')
    a(f's_lshl_b32 s21, s{S_W}, 8'); a(f'v_add_u32 v{RO}, s21, v{RO}')

def ring_init(a, L16, s_base, t, s_t, rows=32):
    if rows == 16:
        a(f'v_mov_b32 v{t}, 1')
        for k in range(1, 4): a(f'v_mov_b32 v{t+k}, 0')
        a(f's_lshl_b32 s{s_t}, s{S_R}, 14'); a(f's_add_u32 s{s_t}, s{s_t}, s{s_base}')
        a(f's_lshl_b32 s21, s{S_W}, 12'); a(f's_add_u32 s{s_t}, s{s_t}, s21')
        for sl in range(2):
            for k in range(4): a(f'buffer_store_dwordx4 {vr(t,4)}, v{L16}, s[{WS}:{WS+3}], s{s_t} offen offset:{1024*k}')
            a(f's_add_u32 s{s_t}, s{s_t}, 0x80000')
        return
    a(f'v_mov_b32 v{t}, 1')
    for k in range(1, 4): a(f'v_mov_b32 v{t+k}, 0')
    a(f's_lshl_b32 s{s_t}, s{S_R}, 15'); a(f's_add_u32 s{s_t}, s{s_t}, s{s_base}')
    a(f's_lshl_b32 s21, s{S_W}, 13'); a(f's_add_u32 s{s_t}, s{s_t}, s21')
    for sl in range(2):
        for hh in range(2):
            for k in range(4): a(f'buffer_store_dwordx4 {vr(t,4)}, v{L16}, s[{WS}:{WS+3}], s{s_t} offen offset:{1024*k}')
            a(f's_add_u32 s{s_t}, s{s_t}, {4096 if hh == 0 else 0x100000 - 4096}')

def reduce_rows(a, n, PB, RD, TG, SEL, RLA, s_src, s_par, s_t, s_sp, fail, pre=None):
    Lp = a.newlabel('L_rp')
    a(f's_mov_b32 s{s_sp}, 0')
    a.label(Lp)
    a(f's_mov_b32 s{s_t}, s{s_src}')
    for i in range(n):
        a(f'buffer_load_dwordx4 {vr(PB+4*i,4)}, v{RLA}, s[{WS}:{WS+3}], s{s_t} offen sc1')
        if i < n - 1: a(f's_add_u32 s{s_t}, s{s_t}, 4096')
    spin(a, s_sp, fail)
    for i in range(n):
        a(f's_waitcnt vmcnt({n-1-i})')
        mf32(a, RD, SEL, PB + 4 * i, '0' if i == 0 else RD)
        if i == 0: a(f'v_xor_b32 v{TG}, s{s_par}, v{PB}')
        else: a(f'v_bitop3_b32 v{TG}, v{TG}, v{PB+4*i}, s{s_par} bitop3:0xf6')
    a(f'v_and_b32 v{TG}, 1, v{TG}')
    a(f'v_cmp_ne_u32 vcc, 0, v{TG}')
    a(f's_cbranch_vccnz {Lp}')

def row16_sum(a, x):
    for r in (8, 4, 2, 1):
        a(f'v_add_f32_dpp v{x}, v{x}, v{x} row_ror:{r} row_mask:0xf bank_mask:0xf')

def wave_row_total(a, x, t, lds_w, lds_off, q):
    row16_sum(a, x)
    a(f'v_mov_b32 v{t}, v{x}'); a(sw16(x, t)); a(f'v_add_f32 v{x}, v{x}, v{t}')
    a(f'ds_write_b32 v{lds_w}, v{x} offset:{lds_off}')
    a('s_waitcnt lgkmcnt(0)'); a('s_barrier')
    a(f'v_mov_b32 v{t}, 0')
    a(f'ds_read_b128 {vr(q,4)}, v{t} offset:{lds_off}')
    a('s_waitcnt lgkmcnt(0)')
    a(f'v_add_f32 v{q}, v{q}, v{q+1}'); a(f'v_add_f32 v{q+2}, v{q+2}, v{q+3}'); a(f'v_add_f32 v{x}, v{q}, v{q+2}')

def load_mod4(a, dst, which, RO, tmp, ss, fail, add1=False):
    L = a.newlabel('L_m4')
    a(f'v_lshlrev_b32 v{tmp+4}, 1, v{RO}')
    a(f's_mov_b32 s21, {WS_MOD + which*2048}'); a(f's_mov_b32 s{ss}, 0')
    a.label(L)
    a(f'buffer_load_dwordx4 {vr(tmp,4)}, v{tmp+4}, s[{WS}:{WS+3}], s21 offen sc1')
    spin(a, ss, fail)
    a('s_waitcnt vmcnt(0)')
    a(f'v_bitop3_b32 v{tmp+1}, v{tmp+1}, v{tmp+3}, s{S_N} bitop3:0x7e')
    a(f'v_cmp_ne_u32 vcc, 0, v{tmp+1}')
    a(f's_cbranch_vccnz {L}')
    unpack(a, dst, dst + 1, tmp); unpack(a, dst + 2, dst + 3, tmp + 2)
    if add1:
        for k in range(4): a(f'v_add_f32 v{dst+k}, 1.0, v{dst+k}')

def dense_rows_unit(a, st, srd_, s_row0, row0, vD, vT, kind, regf, SO, SM, tmp):
    def issue(lds):
        a(f's_lshl_b32 s{SO}, s{S_W}, 12'); a(f's_add_u32 s{SO}, s{SO}, s{s_row0}'); a(f's_add_u32 s{SO}, s{SO}, {row0*1024}')
        dma4(a, vD, srd_, SO, 1024, lds, SM)
    def read(lds):
        for m in range(8):
            a(f'v_xor_b32 v{tmp}, {m*32}, v{vT}')
            if lds: a(f'v_add_u32 v{tmp}, {lds}, v{tmp}')
            a(f'ds_read_b64_tr_b16 {kind}[{regf(m)}:{regf(m)+1}], v{tmp}')
    st.add(issue, read)

def dense_rows_addrs(a, ln, g, rp, cp, vD, vT, t1, t2):
    a(f's_and_b32 s21, s{S_W}, 1'); a('s_lshl_b32 s21, s21, 3')
    for i in range(4):
        a(f'v_xor_b32 v{t1}, {2*i}, v{ln}'); a(f'v_xor_b32 v{t1}, s21, v{t1}'); a(f'v_lshlrev_b32 v{vD[i]}, 4, v{t1}')
    a(f'v_lshl_add_u32 v{t1}, v{g}, 2, v{rp}')
    a(f'v_and_b32 v{t2}, 7, v{t1}'); a(f'v_lshlrev_b32 v{t2}, 5, v{t2}')
    a(f'v_lshl_add_u32 v{t2}, v{t1}, 10, v{t2}')
    a(f'v_lshl_add_u32 v{t2}, v{cp}, 3, v{t2}')
    a(f's_lshl_b32 s21, s{S_W}, 8'); a(f'v_add_u32 v{vT}, s21, v{t2}')

def gen_att(a, fail='L_fail', done='L_done'):
    a.comment('================= ATT role: head s4, segments of parity xcc-4 =================')
    L_MEM, L_KC, L_VC, L_OX, L_LN, L_ST = 0, 0x2000, 0x3000, 0x4000, 0x6000, 0x8000
    L16, IDX, TR, KW = 0, 1, 2, 3
    HALF, ONES, OWA, PSA, RO, CKA, VMA, RLA = 4, 6, 10, 11, 12, 13, 14, 15
    GA, CB1, SB, SEL = 16, 20, 24, 28
    QF, KX, VX = 32, 48, 80
    X0, X1, E, PX, LL, O, MA, AK, AV = 96, 100, 104, 112, 116, 48, 64, 104, 120
    KMF, VM, Y, PM, OF = 64, 80, 108, 112, 64
    T0, T1, SP, SO, SM, SEG, SQ, SMEM, SPART, SPAR, SFL, SCS, SLIM, SSENT, SRED, SROW, SNB, SM0 = range(20, 38)
    MK = 40
    a(f's_load_dwordx4 s[60:63], s[0:1], {KA["Wk"]}')
    a(f's_load_dwordx2 s[64:65], s[0:1], {KA["Wo"]}')
    a(f's_load_dwordx2 s[66:67], s[0:1], {KA["x"]}')
    ln, g, c, rp, cp = 100, 101, 102, 103, 104
    lane_parts(a, ln, g, c, rp, cp); a(f'v_lshlrev_b32 v{L16}, 4, v{ln}')
    t1, t2, t3 = 105, 106, 107
    DA, TA, DO, TO, TMPV = 108, 112, 114, 118, 119
    for aa in range(4):
        a(f'v_and_b32 v{t1}, 1, v{g}'); a(f'v_or_b32 v{t1}, {aa<<1}, v{t1}'); a(f'v_lshlrev_b32 v{t1}, 1, v{t1}')
        a(f'v_xor_b32 v{t1}, v{t1}, v{c}'); a(f'v_lshlrev_b32 v{t1}, 4, v{t1}'); a(f'v_lshl_add_u32 v{DA+aa}, v{g}, 13, v{t1}')
    a(f'v_lshrrev_b32 v{t1}, 1, v{g}'); a(f'v_lshlrev_b32 v{t1}, 4, v{t1}'); a(f'v_lshrrev_b32 v{t2}, 1, v{rp}')
    a(f'v_lshl_add_u32 v{t1}, v{t2}, 3, v{t1}'); a(f'v_and_b32 v{t3}, 1, v{g}'); a(f'v_lshl_add_u32 v{t1}, v{t3}, 2, v{t1}')
    a(f'v_and_b32 v{TMPV}, 1, v{rp}'); a(f'v_add_u32 v{t1}, v{t1}, v{TMPV}')
    a(f'v_lshl_add_u32 v{TMPV}, v{t3}, 1, v{TMPV}'); a(f'v_lshl_add_u32 v{TMPV}, v{t2}, 2, v{TMPV}')
    a(f's_lshl_b32 s{T0}, s{S_W}, 1'); a(f'v_xor_b32 v{TMPV}, s{T0}, v{TMPV}'); a(f'v_lshlrev_b32 v{TMPV}, 5, v{TMPV}')
    a(f'v_lshl_add_u32 v{TMPV}, v{t1}, 8, v{TMPV}'); a(f'v_lshl_add_u32 v{TA}, v{cp}, 3, v{TMPV}'); a(f'v_xor_b32 v{TA+1}, 32, v{TA}')
    dense_rows_addrs(a, ln, g, rp, cp, [DO + i for i in range(4)], TO, t1, t2)
    a(f'v_and_b32 v{t1}, 8, v{ln}'); a(f'v_cmp_eq_u32 vcc, 0, v{t1}'); a(f'v_mov_b32 v{t2}, 0xeeeeeeee'); a(f'v_mov_b32 v{t3}, 0x44444444')
    a(f'v_cndmask_b32 v{IDX}, v{t2}, v{t3}, vcc')
    a(f'v_xor_b32 v{t2}, v{g}, v{rp}'); a(f'v_lshlrev_b32 v{t1}, 5, v{c}'); a(f'v_lshl_add_u32 v{t1}, v{t2}, 3, v{t1}')
    a(f's_lshl_b32 s{T0}, s{S_W}, 10'); a(f's_add_u32 s{T1}, s{T0}, {L_KC}'); a(f'v_add_u32 v{KW}, s{T1}, v{t1}')
    a(f'v_lshl_add_u32 v{t1}, v{g}, 2, v{rp}'); a(f'v_xor_b32 v{t2}, v{cp}, v{g}'); a(f'v_lshlrev_b32 v{t2}, 3, v{t2}'); a(f'v_lshl_add_u32 v{TR}, v{t1}, 5, v{t2}')
    for k in range(2): a(f'v_mov_b32 v{HALF+k}, 0x3f003f00')
    for k in range(4): a(f'v_mov_b32 v{ONES+k}, 0x3f803f80')
    a(f's_and_b32 s{T0}, s{S_W}, 1'); a(f's_lshl_b32 s{T0}, s{T0}, 12'); a(f's_lshr_b32 s{T1}, s{S_W}, 1'); a(f's_lshl_b32 s{T1}, s{T1}, 11')
    a(f's_add_u32 s{T0}, s{T0}, s{T1}'); a(f's_add_u32 s{T0}, s{T0}, {L_OX}'); a(f'v_add_u32 v{OWA}, s{T0}, v{L16}')
    a(f's_add_u32 s{T1}, s{T1}, {L_VC}'); a(f'v_add_u32 v{VMA}, s{T1}, v{L16}')
    a(f's_lshl_b32 s{SM0}, s{S_W}, 11'); a(f'v_add_u32 v{CKA}, s{SM0}, v{L16}')
    row_addrs(a, g, c, PSA, RLA, RO, t1)
    make_selector(a, ln, SEL, t1, t2, t3)
    a(f's_and_b32 s{T0}, s{S_W}, 1')
    for r in range(4):
        a(f'v_lshl_add_u32 v{t1}, v{g}, 2, {r}'); a(f'v_cmp_le_u32 vcc, v{t1}, v{c}')
        a(f's_cmp_eq_u32 s{T0}, 0')
        a(f's_cselect_b64 s[{MK+2*r}:{MK+2*r+1}], vcc, -1')
        a(f's_cselect_b64 s[{MK+8+2*r}:{MK+9+2*r}], 0, vcc')
    get_nonce(a, 32, SP, fail)
    a(f's_sub_u32 s{SEG}, s{S_X}, 3')
    a(f's_lshl_b32 s{SPART}, s{SEG}, 21'); a(f's_add_u32 s{SPART}, s{SPART}, {WS_APART:#x}')
    if GATE[1]: gate(a, 'kv', 32, T0, SP, fail)
    ring_init(a, L16, SPART, 32, SO)
    a('s_waitcnt lgkmcnt(0)')
    st = Stager(a, L_ST, 8)
    curp = [None]
    def use(p):
        if curp[0] != p: srd(a, TS, p, p + 1, 4 << 20); curp[0] = p
    for mi, p in enumerate((60, 62)):
        for kk in range(8):
            def issue(lds, p=p, kk=kk):
                use(p)
                a(f's_lshl_b32 s{SO}, s{S_W}, 17'); a(f's_lshl_b32 s{T0}, s{S_R}, 8'); a(f's_add_u32 s{SO}, s{SO}, s{T0}'); a(f's_add_u32 s{SO}, s{SO}, {kk*64*8192:#x}')
                dma4(a, [DA + i for i in range(4)], TS, SO, 4 * 8192, lds, SM)
            def read(lds, mi=mi, kk=kk):
                for u in range(2):
                    a(f'v_add_u32 v{TMPV}, {lds}, v{TA+u}')
                    for hf in range(2):
                        for x in range(2):
                            b = mi * 128 + (kk * 2 + u) * 8 + hf * 4 + x * 2
                            a(f'ds_read_b64_tr_b16 a[{b}:{b+1}], v{TMPV} offset:{hf*8192 + x*512}')
            st.add(issue, read)
    a(f's_lshl_b32 s{SROW}, s{S_R}, 17')
    for t in range(4):
        for x in range(2):
            n0 = len(st.units)
            dense_rows_unit(a, st, TS, SROW, 32 * t + 16 * x, [DO + i for i in range(4)], TO, 'v', lambda m, t=t, x=x: 128 + (m * 4 + t) * 4 + 2 * x, SO, SM, TMPV)
            i0, r0 = st.units[n0]
            st.units[n0] = ((lambda lds, i0=i0: (use(64), i0(lds))), r0)
    vm = VmTrack(); vm.add('init')
    def mid(i, vm):
        if i == 0:
            grp_flag(a, T0, 32)
    st.run(vm, mid)
    load_mod4(a, GA, 2, RO, 32, SP, fail)
    wait_flags(a, 32, T0, SP, fail)
    tmark(a, 6)
    srd(a, TS, 66, 67, 2 << 20)
    a(f's_mov_b32 s{SCS}, {f32bits(SCALE_LOG2E):#x}'); a(f's_mov_b32 s{SLIM}, {f32bits(2.0**60):#x}'); a(f's_mov_b32 s{SSENT}, {SENT:#x}')
    a(f's_mov_b32 s{SNB}, {f32bits(-1e30):#x}')
    a(f's_lshl_b32 s{SFL}, s{S_R}, 7'); a(f's_add_u32 s{SFL}, s{SFL}, {WS_FLAG:#x}')
    Lp = a.newlabel('L_at'); Lfb = a.newlabel('L_atfb'); Lfr = a.newlabel('L_atfr')
    ex = lambda d, s_: a(f'v_exp_f32 v{d}, v{s_}')
    def smfa(acc, A, B): a(f'v_smfmac_f32_16x16x64_bf16 {vr(acc,4)}, {vr(A,4)}, a[{B}:{B+7}], v{IDX}')
    L_QKV = 0x8000
    SFB, SIT = 38, 39
    SNX, SBUF = 56, 57
    QA, KA_, VA = 126, 127, 123
    KXR, XR, FL = 64, 124, 122
    def fetch():
        Lf = a.newlabel('L_atf')
        a(f's_mov_b32 s{SP}, 0')
        a.label(Lf)
        a('s_mov_b64 exec, 3'); a(f'buffer_load_dword v{FL}, v{L16}, s[{WS}:{WS+3}], s{SFL} offen sc1')
        spin(a, SP, fail)
        a(f's_add_u32 s{T0}, s{S_N}, s{SNX}'); a(f's_add_u32 s{T0}, s{T0}, 1'); a(f's_sub_u32 s{T1}, 63, s{SNX}')
        a('s_waitcnt vmcnt(0)')
        a(f'v_subrev_u32 v{FL}, s{T0}, v{FL}')
        a(f'v_cmp_lt_u32 vcc, s{T1}, v{FL}')
        a('s_mov_b64 exec, -1')
        a(f's_cbranch_vccnz {Lf}')
        a(f's_lshl_b32 s{SQ}, s{S_R}, 15'); a(f's_lshl_b32 s{T0}, s{SNX}, 20'); a(f's_add_u32 s{SQ}, s{SQ}, s{T0}'); a(f's_add_u32 s{SQ}, s{SQ}, {WS_QKV:#x}')
        a(f's_mul_i32 s{T0}, s{S_W}, 6144'); a(f's_add_u32 s{SQ}, s{SQ}, s{T0}')
        a(f's_add_u32 s{T0}, s{T0}, s{SFB}'); a(f's_xor_b32 s{SFB}, s{SFB}, 0x18000')
        a(f's_mov_b32 m0, s{T0}')
        for i in range(3): a(f'buffer_load_dwordx4 v{L16}, s[{WS}:{WS+3}], s{SQ} offen offset:{1024*i} sc1 lds')
        a(f's_add_u32 s{T0}, s{T0}, 3072'); a(f's_add_u32 s{SQ}, s{SQ}, 3072'); a(f's_mov_b32 m0, s{T0}')
        for i in range(3): a(f'buffer_load_dwordx4 v{L16}, s[{WS}:{WS+3}], s{SQ} offen offset:{1024*i} sc1 lds')
        a(f's_add_u32 s{SNX}, s{SNX}, {N_ATT}')
    def vread():
        for j in range(4): a(f'ds_read_b128 {vr(KXR+4*j,4)}, v{VA} offset:{1024*j}')
    def phase_a(seg_reg):
        a(f's_xor_b32 s{SBUF}, s{SBUF}, 0x18000')
        a(f's_and_b32 s{T0}, s{S_W}, 1'); a(f's_lshl_b32 s{T0}, s{T0}, 12'); a(f's_add_u32 s{T0}, s{T0}, s{SBUF}'); a(f'v_add_u32 v{QA}, s{T0}, v{L16}')
        a(f'v_add_u32 v{KA_}, s{SBUF}, v{L16}')
        a(f's_lshr_b32 s{T0}, s{S_W}, 1'); a(f's_lshl_b32 s{T0}, s{T0}, 12'); a(f's_add_u32 s{T0}, s{T0}, s{SBUF}'); a(f's_add_u32 s{T0}, s{T0}, 16384'); a(f'v_add_u32 v{VA}, s{T0}, v{L16}')
        for t in range(4):
            a(f'ds_read_b128 {vr(QF+4*t,4)}, v{QA} offset:{1024*t}'); a(f'ds_read_b128 {vr(KXR+4*t,4)}, v{KA_} offset:{8192 + 1024*t}')
        for t in range(4):
            a(f's_waitcnt lgkmcnt({6-t})')
            mf32(a, X0, KXR + 4 * t, QF + 4 * t, '0' if t == 0 else X0)
            a(f'ds_read_b128 {vr(KXR+16+4*t,4)}, v{KA_} offset:{12288 + 1024*t}')
        for t in range(4):
            a(f's_waitcnt lgkmcnt({3-t})')
            mf32(a, X1, KXR + 16 + 4 * t, QF + 4 * t, '0' if t == 0 else X1)
        vread()
        for r in range(8): ex(E + r, X0 + r)
        for r in range(8): a(f'v_cndmask_b32 v{E+r}, 0, v{E+r}, s[{MK+2*r}:{MK+2*r+1}]')
        for r in range(4): cvt(a, PX + r, E + 2 * r, E + 2 * r + 1)
        a('s_waitcnt lgkmcnt(0)')
        mf32(a, LL, ONES, PX, '0')
        for j in range(4): mf32(a, O + 4 * j, KXR + 4 * j, PX, '0')
    a(f's_mov_b32 s{SNX}, s{SEG}'); a(f's_mov_b32 s{SFB}, 0x8000'); a(f's_mov_b32 s{SBUF}, 0x10000'); a(f's_mov_b32 s{SIT}, 0')
    fetch(); fetch()
    a('s_waitcnt vmcnt(6)'); a('s_barrier')
    phase_a(SEG)
    a.label(Lp)
    lmark(a, 1)
    a(f's_lshl_b32 s{SROW}, s{SEG}, 5'); a(f's_add_u32 s{SROW}, s{SROW}, s{S_R}'); a(f's_lshl_b32 s{SROW}, s{SROW}, 10')
    a(f's_lshl_b32 s{SMEM}, s{SEG}, 13'); a(f's_add_u32 s{SMEM}, s{SMEM}, s{SM0}'); a(f's_add_u32 s{SMEM}, s{SMEM}, {WS_MEMG:#x}')
    a(f's_bfe_u32 s{SPAR}, s{SIT}, 0x10001')
    a(f's_and_b32 s{T0}, s{SIT}, 1'); a(f's_lshl_b32 s{T0}, s{T0}, 20'); a(f's_add_u32 s{SRED}, s{T0}, s{SPART}')
    a(f's_add_u32 s{SIT}, s{SIT}, 1')
    for k in range(0, 8, 2): a(f'v_mov_b64 {vr(AK+k,2)}, 0')
    AVt = (112, 88 + 0)
    Lq = a.newlabel('L_atq')
    a(f's_mov_b32 m0, s{SM0}'); a(f's_mov_b32 s{SP}, 0')
    a.label(Lq)
    a(f'buffer_load_dwordx4 v{L16}, s[{WS}:{WS+3}], s{SMEM} offen sc1 lds')
    a(f'buffer_load_dwordx4 v{L16}, s[{WS}:{WS+3}], s{SMEM} offen offset:1024 sc1 lds')
    spin(a, SP, fail)
    a('s_waitcnt vmcnt(0)')
    a(f'ds_read2st64_b32 {vr(PX,2)}, v{CKA} offset0:0 offset1:4')
    a('s_waitcnt lgkmcnt(0)')
    a(f'v_cmp_eq_u32 vcc, s{SSENT}, v{PX}'); a(f'v_cmp_eq_u32 s[{T0}:{T1}], s{SSENT}, v{PX+1}'); a(f's_or_b64 vcc, vcc, s[{T0}:{T1}]')
    a(f's_cbranch_vccnz {Lq}')
    a('s_barrier')
    lmark(a, 2)
    AVa, AVb = 112, 120
    for kk in range(4): a(f'ds_read_b128 {vr(MA+4*kk,4)}, v{L16} offset:{L_MEM + kk*1024}')
    for b in (AVa, AVa + 2, AVb, AVb + 2): a(f'v_mov_b64 {vr(b,2)}, 0')
    a(f'buffer_load_dwordx2 {vr(XR,2)}, v{RO}, s[{TS}:{TS+3}], s{SROW} offen')
    for kk in range(8):
        a(f's_waitcnt lgkmcnt({min(3, 7-kk)})')
        smfa(AK, MA + 4 * kk, (kk * 2) * 8)
        if kk < 4: a(f'ds_read_b128 {vr(MA+16+4*kk,4)}, v{L16} offset:{L_MEM + (kk+4)*1024}')
        smfa(AK + 4, MA + 4 * kk, (kk * 2 + 1) * 8)
    for gi in range(16):
        u, kk = gi >> 3, gi & 7
        smfa((AVa, AVb)[u], MA + 4 * kk, 128 + (kk * 2 + u) * 8)
        if 2 <= gi < 6: cvt(a, AK + gi - 2, AK + 2 * (gi - 2), AK + 2 * (gi - 2) + 1)
        if gi == 6: a(f'ds_write_b64 v{KW}, {vr(AK,2)}')
        if gi == 7: a(f'ds_write_b64 v{KW}, {vr(AK+2,2)} offset:512')
        if gi == 10: cvt(a, AVa, AVa, AVa + 1)
        if gi == 11: cvt(a, AVa + 1, AVa + 2, AVa + 3)
        if gi == 12: a(f's_lshl_b32 s{T0}, s{S_W}, 10'); a(f'v_add_u32 v{AK}, s{T0}, v{L16}')
    cvt(a, AVa + 2, AVb, AVb + 1); cvt(a, AVa + 3, AVb + 2, AVb + 3)
    a(f'ds_write_b128 v{AK}, {vr(AVa,4)} offset:{L_VC}')
    a('s_waitcnt lgkmcnt(0)'); a('s_barrier')
    for t in range(4):
        for x in range(2): a(f'ds_read_b64_tr_b16 {vr(KMF+4*t+2*x,2)}, v{TR} offset:{L_KC + (32*t+16*x)*32}')
    a(f'ds_read_b128 {vr(VM,4)}, v{VMA}'); a(f'ds_read_b128 {vr(VM+4,4)}, v{VMA} offset:1024')
    for t in range(4):
        a(f's_waitcnt lgkmcnt({8-2*t})')
        mf32(a, Y, KMF + 4 * t, QF + 4 * t, '0' if t == 0 else Y)
    a(sw32(Y, Y + 2)); a(sw32(Y + 1, Y + 3))
    a(f'v_add_f32 v{Y}, v{Y}, v{Y+2}'); a(f'v_add_f32 v{Y+1}, v{Y+1}, v{Y+3}')
    a(f'v_mul_f32 v{Y}, s{SCS}, v{Y}'); a(f'v_mul_f32 v{Y+1}, s{SCS}, v{Y+1}')
    ex(Y + 2, Y); ex(Y + 3, Y + 1)
    cvt(a, PM, Y + 2, Y + 3); a(f'v_mov_b32 v{PM+1}, v{PM}'); a(sw32(PM, PM + 1))
    a('s_waitcnt lgkmcnt(0)')
    mf16(a, LL, HALF, PM, LL)
    for j in range(4): mf16(a, O + 4 * j, VM + 2 * j, PM, O + 4 * j)
    RL, TT = PM + 2, PM + 3
    a(f'v_rcp_f32 v{RL}, v{LL}'); a(f'v_max_f32 v{TT}, v{LL}, v{RL}'); a(f'v_cmp_nge_f32 vcc, s{SLIM}, v{TT}')
    a(f's_cbranch_vccnz {Lfb}')
    a.label(Lfr)
    for k in range(16): a(f'v_mul_f32 v{O+k}, v{O+k}, v{RL}')
    for k in range(8): cvt(a, O + k, O + 2 * k, O + 2 * k + 1)
    a(f'ds_write_b128 v{OWA}, {vr(O,4)}'); a(f'ds_write_b128 v{OWA}, {vr(O+4,4)} offset:1024')
    a(f's_lshl_b32 s{T0}, s{S_R}, 10'); a(f's_lshl_b32 s{T1}, s{S_W}, 8'); a(f's_add_u32 s{T0}, s{T0}, s{T1}'); a(f's_add_u32 s{T0}, s{T0}, s{SRED}')
    a(f's_add_u32 s{T1}, s{T0}, 0x80000')
    a('s_waitcnt lgkmcnt(0)'); a('s_barrier')
    lmark(a, 3)
    for f in range(8): a(f'ds_read_b128 {vr(OF+4*f,4)}, v{L16} offset:{L_OX + f*1024}')
    groups = [(k, tt) for tt in range(2) for k in range(4)]
    def g_out(gi):
        k, tt = groups[gi]; A_ = 96 + 8 * (gi & 1); P_ = 48 + 4 * (gi & 3)
        return [lambda q=q: cvt(a, P_ + q, A_ + 2 * q, A_ + 2 * q + 1) for q in range(4)] + \
               [lambda: a(f'v_bfi_b32 v{P_}, 1, s{SPAR}, v{P_}'),
                lambda: a(f'buffer_store_dwordx4 {vr(P_,4)}, v{PSA}, s[{WS}:{WS+3}], s{T0 if tt == 0 else T1} offen offset:{64*k}')]
    for gi, (k, tt) in enumerate(groups):
        A_ = 96 + 8 * (gi & 1)
        pend = g_out(gi - 1) if gi else []
        n = 0
        for t in range(4):
            if gi == 0: a(f's_waitcnt lgkmcnt({7-t})')
            if gi == 4 and t == 0: a('s_waitcnt lgkmcnt(0)')
            for mm in range(2):
                D = A_ + 4 * mm
                mf32(a, D, 128 + ((2 * k + mm) * 4 + t) * 4, OF + 4 * (tt * 4 + t), '0' if t == 0 else D)
                n += 1
                if n >= 3 and pend: pend.pop(0)()
        while pend: pend.pop(0)()
    for f in g_out(7): f()
    lmark(a, 4)
    Lna = a.newlabel('L_atna')
    a(f's_add_u32 s{T0}, s{SEG}, {N_ATT}'); a(f's_cmp_lt_u32 s{T0}, 64'); a(f's_cbranch_scc0 {Lna}')
    phase_a(None)
    a.label(Lna)
    lmark(a, 0)
    a(f's_lshl_b32 s{T0}, s{S_R}, 15'); a(f's_lshl_b32 s{T1}, s{S_W}, 8'); a(f's_add_u32 s{T0}, s{T0}, s{T1}'); a(f's_add_u32 s{SRED}, s{SRED}, s{T0}')
    RD, TG = 104, 108
    reduce_rows(a, 8, 64, RD, TG, SEL, RLA, SRED, SPAR, T0, SP, fail)
    XF = 108
    lmark(a, 5)
    def rnd4(b):
        cvt(a, b, b, b + 1); cvt(a, b + 1, b + 2, b + 3)
        unpack(a, b + 2, b + 3, b + 1); a(f'v_and_b32 v{b+1}, 0xffff0000, v{b}'); a(f'v_lshlrev_b32 v{b}, 16, v{b}')
    unpack(a, XF, XF + 1, XR); unpack(a, XF + 2, XF + 3, XR + 1)
    rnd4(RD)
    for k in range(4): a(f'v_mul_f32 v{RD+k}, v{GA+k}, v{RD+k}')
    rnd4(RD)
    for k in range(4): a(f'v_add_f32 v{XF+k}, v{XF+k}, v{RD+k}')
    cvt(a, RD, XF, XF + 1); cvt(a, RD + 1, XF + 2, XF + 3)
    a(f's_add_u32 s{T0}, s{SROW}, {WS_X1:#x}')
    a(f'buffer_store_dwordx2 {vr(RD,2)}, v{RO}, s[{WS}:{WS+3}], s{T0} offen sc1')
    Lnf = a.newlabel('L_atnf')
    a(f's_cmp_lt_u32 s{SNX}, 64'); a(f's_cbranch_scc0 {Lnf}')
    fetch()
    a.label(Lnf)
    a(f's_add_u32 s{SEG}, s{SEG}, {N_ATT}')
    a(f's_cmp_lt_u32 s{SEG}, 64')
    a(f's_cbranch_scc1 {Lp}')
    a(f's_branch {done}')
    a.label(Lfb)
    a.fence(16)
    a(f's_lshr_b32 s{T0}, s{S_W}, 1'); a(f's_lshl_b32 s{T0}, s{T0}, 12'); a(f's_add_u32 s{T0}, s{T0}, s{SBUF}'); a(f's_add_u32 s{T0}, s{T0}, 16384'); a(f'v_add_u32 v{VA}, s{T0}, v{L16}')
    vread()
    for r in range(8): a(f'v_mov_b32 v{TT}, s{SNB}'); a(f'v_cndmask_b32 v{X0+r}, v{TT}, v{X0+r}, s[{MK+2*r}:{MK+2*r+1}]')
    a(f'v_max3_f32 v{RL}, v{X0}, v{X0+1}, v{X0+2}'); a(f'v_max3_f32 v{RL}, v{RL}, v{X0+3}, v{X1}')
    a(f'v_max3_f32 v{RL}, v{RL}, v{X1+1}, v{X1+2}'); a(f'v_max3_f32 v{RL}, v{RL}, v{X1+3}, v{Y}'); a(f'v_max_f32 v{RL}, v{RL}, v{Y+1}')
    a(f'v_mov_b32 v{TT}, v{RL}'); a(sw32(RL, TT)); a(f'v_max_f32 v{RL}, v{RL}, v{TT}')
    a(f'v_mov_b32 v{TT}, v{RL}'); a(sw16(RL, TT)); a(f'v_max_f32 v{RL}, v{RL}, v{TT}')
    for r in range(8): a(f'v_sub_f32 v{X0+r}, v{X0+r}, v{RL}'); ex(X0 + r, X0 + r)
    for r in range(8): a(f'v_cndmask_b32 v{X0+r}, 0, v{X0+r}, s[{MK+2*r}:{MK+2*r+1}]')
    for r in range(4): cvt(a, 88 + r, X0 + 2 * r, X0 + 2 * r + 1)
    for r in range(2): a(f'v_sub_f32 v{Y+2+r}, v{Y+r}, v{RL}'); ex(Y + 2 + r, Y + 2 + r)
    cvt(a, PM, Y + 2, Y + 3); a(f'v_mov_b32 v{PM+1}, v{PM}'); a(sw32(PM, PM + 1))
    a('s_waitcnt lgkmcnt(0)')
    mf32(a, LL, ONES, 88, '0')
    for j in range(4): mf32(a, O + 4 * j, KXR + 4 * j, 88, '0')
    mf16(a, LL, HALF, PM, LL)
    for j in range(4): mf16(a, O + 4 * j, VM + 2 * j, PM, O + 4 * j)
    a.fence(12)
    a(f'v_rcp_f32 v{RL}, v{LL}')
    a('s_nop 1')
    a(f's_branch {Lfr}')

def gen_ffn(a, fail='L_fail', done='L_done'):
    a.comment('================= FFN role =================')
    L_H, L_FX, L_LN, L_ST = 0, 0x4000, 0x5000, 0x8000
    L16, HG, PSA, RO, RLA, CKA, TM, FW = 0, 1, 2, 3, 4, 5, 6, 7
    GB, SEL, CB1, SB = 8, 12, 16, 20
    T0, T1, SP, SO, SM, SEG, SPART, SPAR, SSENT, SRED, SROW, SNL, SH, SHL = range(20, 34)
    a(f's_load_dwordx4 s[60:63], s[0:1], {KA["w1"]}')
    a(f's_load_dwordx2 s[64:65], s[0:1], {KA["out"]}')
    ln, g, c, rp, cp = 100, 101, 102, 103, 104
    lane_parts(a, ln, g, c, rp, cp); a(f'v_lshlrev_b32 v{L16}, 4, v{ln}')
    t1, t2, t3 = 105, 106, 107
    D1, T1A, DO, TO, TMPV = 108, 110, 114, 118, 119
    a(f's_mov_b32 s{T0}, 3584')
    for hv in range(2):
        a(f'v_or_b32 v{t1}, {hv<<2}, v{g}'); a(f'v_lshlrev_b32 v{t1}, 1, v{t1}'); a(f'v_xor_b32 v{t1}, v{t1}, v{c}')
        a(f'v_lshlrev_b32 v{t1}, 4, v{t1}'); a(f'v_mad_u32_u24 v{D1+hv}, v{g}, s{T0}, v{t1}')
    a(f'v_lshl_add_u32 v{t1}, v{g}, 3, v{rp}'); a(f'v_and_b32 v{t2}, 1, v{g}'); a(f'v_lshl_add_u32 v{t2}, v{t2}, 2, v{rp}')
    a(f's_lshl_b32 s{T0}, s{S_W}, 1'); a(f'v_xor_b32 v{t2}, s{T0}, v{t2}'); a(f'v_lshlrev_b32 v{t2}, 5, v{t2}')
    a(f'v_lshl_add_u32 v{t2}, v{t1}, 8, v{t2}'); a(f'v_lshl_add_u32 v{T1A}, v{cp}, 3, v{t2}'); a(f'v_xor_b32 v{T1A+1}, 32, v{T1A}')
    dense_rows_addrs(a, ln, g, rp, cp, [DO + i for i in range(4)], TO, t1, t2)
    a(f'v_lshrrev_b32 v{t1}, 2, v{c}'); a(f'v_lshlrev_b32 v{HG}, 10, v{t1}')
    a(f'v_and_b32 v{t1}, 1, v{g}'); a(f'v_lshl_add_u32 v{HG}, v{t1}, 9, v{HG}')
    a(f'v_bfe_u32 v{t1}, v{c}, 1, 1'); a(f'v_lshl_add_u32 v{HG}, v{t1}, 8, v{HG}')
    a(f'v_and_b32 v{t1}, 1, v{c}'); a(f'v_lshl_add_u32 v{HG}, v{t1}, 3, v{HG}')
    a(f's_lshl_b32 s{T0}, s{S_W}, 12'); a(f's_lshr_b32 s{T1}, s{S_R}, 4'); a(f's_lshl_b32 s{T1}, s{T1}, 14'); a(f's_add_u32 s{T0}, s{T0}, s{T1}')
    a(f's_and_b32 s{T1}, s{S_R}, 15'); a(f's_lshl_b32 s{T1}, s{T1}, 4'); a(f's_add_u32 s{T0}, s{T0}, s{T1}'); a(f'v_add_u32 v{HG}, s{T0}, v{HG}')
    a(f's_lshl_b32 s{T0}, s{S_W}, 10'); a(f's_add_u32 s{T0}, s{T0}, {L_FX}'); a(f'v_add_u32 v{FW}, s{T0}, v{L16}')
    a(f's_lshl_b32 s{T0}, s{S_W}, 12'); a(f'v_add_u32 v{CKA}, s{T0}, v{L16}')
    a(f'v_and_b32 v{TM}, 1, v{ln}'); a(f'v_xor_b32 v{TM}, 1, v{TM}')
    row_addrs(a, g, c, PSA, RLA, RO, t1, sh=14)
    make_selector(a, ln, SEL, t1, t2, t3)
    a(f's_sub_u32 s{SEG}, s{S_X}, 6')
    a(f's_lshl_b32 s{SPART}, s{SEG}, 21'); a(f's_add_u32 s{SPART}, s{SPART}, {WS_FPART:#x}')
    a(f's_add_u32 s{SHL}, s{SPART}, 0x100000')
    if GATE[1]: gate(a, 'kv', 32, T0, SP, fail)
    ring_init(a, L16, SPART, 32, SO, rows=16)
    a(f'buffer_store_dwordx2 v[32:33], v{HG}, s[{WS}:{WS+3}], s{SHL} offen'); a(f's_add_u32 s{SO}, s{SHL}, 0x8000')
    a(f'buffer_store_dwordx2 v[32:33], v{HG}, s[{WS}:{WS+3}], s{SO} offen')
    a('s_waitcnt vmcnt(0) lgkmcnt(0)'); a('s_barrier')
    grp_flag(a, T0, 32)
    Lnw = a.newlabel('L_fnw')
    a(f's_cmp_ge_u32 s{S_R}, 28'); a(f's_cbranch_scc1 {Lnw}')
    st = Stager(a, L_ST, 8)
    for un in range(8):
        def issue(lds, un=un):
            if un == 0: srd(a, TS, 60, 61, 512 * 3584)
            a(f's_mul_i32 s{SO}, s{S_W}, {16*3584}'); a(f's_lshr_b32 s{T0}, s{S_R}, 1'); a(f's_lshl_b32 s{T0}, s{T0}, 8'); a(f's_add_u32 s{SO}, s{SO}, s{T0}'); a(f's_add_u32 s{SO}, s{SO}, {un*64*3584}')
            dma4(a, (D1, D1, D1 + 1, D1 + 1), TS, SO, 4 * 3584, lds, SM)
        def read(lds, un=un):
            for u in range(2):
                a(f'v_add_u32 v{TMPV}, {lds}, v{T1A+u}')
                for k2 in range(2):
                    for x in range(2):
                        b = ((un * 2 + k2) * 2 + u) * 4 + 2 * x
                        a(f'ds_read_b64_tr_b16 a[{b}:{b+1}], v{TMPV} offset:{(32*k2 + 4*x)*256}')
        st.add(issue, read)
    a(f's_lshr_b32 s{SROW}, s{S_R}, 1'); a(f's_lshl_b32 s{SROW}, s{SROW}, 17')
    for t in range(4):
        for x in range(2):
            n0 = len(st.units)
            dense_rows_unit(a, st, TS, SROW, 32 * t + 16 * x, [DO + i for i in range(4)], TO, 'a', lambda m, t=t, x=x: 128 + (m * 4 + t) * 4 + 2 * x, SO, SM, TMPV)
            if n0 == 8:
                i0, r0 = st.units[n0]
                st.units[n0] = ((lambda lds, i0=i0: (srd(a, TS, 62, 63, 1792 * 1024), i0(lds))), r0)
    st.run()
    a.label(Lnw)
    load_mod4(a, GB, 5, RO, 32, SP, fail); load_mod4(a, SB, 3, RO, 32, SP, fail); load_mod4(a, CB1, 4, RO, 32, SP, fail, add1=True)
    wait_flags(a, 32, T0, SP, fail)
    tmark(a, 6)
    srd(a, TS, 64, 65, 2 << 20)
    a(f's_mov_b32 s{SSENT}, {SENT:#x}'); a(f's_mov_b32 s{SNL}, {f32bits(-LOG2E):#x}')
    Lp = a.newlabel('L_ff'); Lred = a.newlabel('L_ffr'); Lzero = a.newlabel('L_ffz')
    XR, XF, X1F = 24, 28, 96
    a.label(Lp)
    lmark(a, 0)
    a(f's_lshl_b32 s{SROW}, s{SEG}, 5'); a(f's_add_u32 s{SROW}, s{SROW}, s{S_R}'); a(f's_lshl_b32 s{SROW}, s{SROW}, 10')
    a(f's_bfe_u32 s{SPAR}, s{SEG}, 0x10002')
    a(f's_bfe_u32 s{T0}, s{SEG}, 0x10001'); a(f's_lshl_b32 s{T1}, s{T0}, 19'); a(f's_add_u32 s{SRED}, s{T1}, s{SPART}')
    a(f's_lshl_b32 s{T0}, s{T0}, 15'); a(f's_add_u32 s{SH}, s{T0}, s{SHL}')
    Lx = a.newlabel('L_ffx')
    a(f's_add_u32 s{T0}, s{SROW}, {WS_X1:#x}'); a(f's_mov_b32 s{SP}, 0')
    a.label(Lx)
    a(f'buffer_load_dwordx2 {vr(XR,2)}, v{RO}, s[{WS}:{WS+3}], s{T0} offen sc1')
    spin(a, SP, fail)
    a('s_waitcnt vmcnt(0)')
    a(f'v_cmp_eq_u32 vcc, s{SSENT}, v{XR}')
    a(f's_cbranch_vccnz {Lx}')
    lmark(a, 1)
    unpack(a, XF, XF + 1, XR); unpack(a, XF + 2, XF + 3, XR + 1)
    SUM, M2, TA_, TQ = 32, 33, 34, 36
    def wave_sum(x):
        row16_sum(a, x)
        a(f'v_mov_b32 v{TA_}, v{x}'); a(sw16(x, TA_)); a(f'v_add_f32 v{x}, v{x}, v{TA_}')
    a(f'v_add_f32 v{SUM}, v{XF}, v{XF+1}'); a(f'v_add_f32 v{M2}, v{XF+2}, v{XF+3}'); a(f'v_add_f32 v{SUM}, v{SUM}, v{M2}')
    wave_sum(SUM)
    a(f'v_mul_f32 v{SUM}, {f32bits(1/128):#x}, v{SUM}')
    for k in range(4): a(f'v_sub_f32 v{TQ+k}, v{XF+k}, v{SUM}')
    a(f'v_mul_f32 v{M2}, v{TQ}, v{TQ}')
    for k in range(1, 4): a(f'v_fmac_f32 v{M2}, v{TQ+k}, v{TQ+k}')
    wave_sum(M2)
    a(f's_lshl_b32 s{T1}, s{S_W}, 3'); a(f'v_mov_b32 v{TA_}, s{T1}')
    a(f'ds_write_b64 v{TA_}, {vr(SUM,2)} offset:{L_LN}')
    a(f'v_mov_b32 v{TA_}, 0')
    a('s_waitcnt lgkmcnt(0)'); a('s_barrier')
    a(f'ds_read_b128 {vr(TQ,4)}, v{TA_} offset:{L_LN}'); a(f'ds_read_b128 {vr(TQ+4,4)}, v{TA_} offset:{L_LN+16}')
    a('s_waitcnt lgkmcnt(0)')
    a(f'v_add_f32 v{SUM}, v{TQ}, v{TQ+2}'); a(f'v_add_f32 v{M2}, v{TQ+4}, v{TQ+6}'); a(f'v_add_f32 v{SUM}, v{SUM}, v{M2}'); a(f'v_mul_f32 v{SUM}, {f32bits(0.25):#x}, v{SUM}')
    a(f'v_add_f32 v{M2}, v{TQ+1}, v{TQ+3}'); a(f'v_add_f32 v{TA_}, v{TQ+5}, v{TQ+7}'); a(f'v_add_f32 v{M2}, v{M2}, v{TA_}')
    for k in range(4): a(f'v_sub_f32 v{TQ+2*k}, v{TQ+2*k}, v{SUM}')
    a(f'v_mul_f32 v{TA_}, v{TQ}, v{TQ}')
    for k in range(1, 4): a(f'v_fmac_f32 v{TA_}, v{TQ+2*k}, v{TQ+2*k}')
    a(f'v_fmac_f32 v{M2}, {f32bits(128.0):#x}, v{TA_}')
    a(f'v_mov_b32 v{TA_}, {f32bits(1e-5):#x}'); a(f'v_fmac_f32 v{TA_}, {f32bits(1/512):#x}, v{M2}'); a(f'v_rsq_f32 v{TA_}, v{TA_}')
    for k in range(4): a(f'v_sub_f32 v{TQ+k}, v{XF+k}, v{SUM}')
    for k in range(4): a(f'v_mul_f32 v{TQ+k}, v{TQ+k}, v{TA_}')
    for k in range(4): a(f'v_fma_f32 v{TQ+k}, v{TQ+k}, v{CB1+k}, v{SB+k}')
    cvt(a, TQ, TQ, TQ + 1); cvt(a, TQ + 1, TQ + 2, TQ + 3)
    a(f'v_bfi_b32 v{TQ}, v{TM}, s{SPAR}, v{TQ}')
    lmark(a, 6)
    a(f'buffer_store_dwordx2 {vr(TQ,2)}, v{HG}, s[{WS}:{WS+3}], s{SH} offen')
    a(f's_cmp_ge_u32 s{S_R}, 28'); a(f's_cbranch_scc1 {Lzero}')
    Lq = a.newlabel('L_ffq')
    a(f's_and_b32 s{T0}, s{S_R}, 1'); a(f's_lshl_b32 s{T0}, s{T0}, 14'); a(f's_add_u32 s{SH}, s{SH}, s{T0}')
    a(f's_lshl_b32 s{SM}, s{S_W}, 12'); a(f's_add_u32 s{SH}, s{SH}, s{SM}')
    a(f's_mov_b32 s{SP}, 0'); a(f's_mov_b32 m0, s{SM}')
    for _ in range(FD[0]): a('s_nop 15')
    a.label(Lq)
    for i in range(4): a(f'buffer_load_dwordx4 v{L16}, s[{WS}:{WS+3}], s{SH} offen offset:{1024*i} sc1 lds')
    spin(a, SP, fail)
    a('s_waitcnt vmcnt(0)')
    for i in range(2): a(f'ds_read2st64_b32 {vr(32+2*i,2)}, v{CKA} offset0:{8*i} offset1:{8*i + 4}')
    a('s_waitcnt lgkmcnt(0)')
    a(f'v_bitop3_b32 v32, v32, v33, s{SPAR} bitop3:0x7e'); a(f'v_bitop3_b32 v34, v34, v35, s{SPAR} bitop3:0x7e')
    a('v_or_b32 v32, v32, v34'); a('v_and_b32 v32, 1, v32'); a('v_cmp_ne_u32 vcc, 0, v32')
    a(f's_cbranch_vccnz {Lq}')
    if LOOPMARK[0]: a(f's_lshl_b32 s76, s{SP}, 10'); a('s_add_u32 s76, s76, s78')
    a('s_barrier')
    lmark(a, 2)
    HF, FA = 32, 96
    def rd(ks): a(f'ds_read_b128 {vr(HF + 4*ks, 4)}, v{L16} offset:{L_H + ks*1024}')
    for ks in range(4): rd(ks)
    for ks in range(16):
        a(f's_waitcnt lgkmcnt({min(3, 15 - ks)})')
        for u in range(2):
            b = (ks * 2 + u) * 4
            a(f'v_mfma_f32_16x16x32_bf16 {vr(FA+4*u,4)}, a[{b}:{b+3}], {vr(HF + 4*ks,4)}, {"0" if ks == 0 else vr(FA+4*u,4)}')
            if u == 0 and ks + 4 < 16: rd(ks + 4)
    a(f's_lshr_b32 s{T0}, s{S_R}, 1'); a(f's_lshl_b32 s{T0}, s{T0}, 10'); a(f's_lshl_b32 s{T1}, s{S_W}, 8'); a(f's_add_u32 s{T0}, s{T0}, s{T1}'); a(f's_add_u32 s{T0}, s{T0}, s{SRED}')
    a(f's_and_b32 s{T1}, s{S_R}, 1'); a(f's_lshl_b32 s{T1}, s{T1}, 18'); a(f's_add_u32 s{T0}, s{T0}, s{T1}')
    for k in range(0, 8, 2):
        cvt(a, 104, FA + k, FA + k + 1); unpack(a, FA + k, FA + k + 1, 104)
    for k in range(8): a(f'v_mul_f32 v{104+k}, s{SNL}, v{FA+k}')
    for k in range(8): a(f'v_exp_f32 v{104+k}, v{104+k}')
    for k in range(8): a(f'v_add_f32 v{104+k}, 1.0, v{104+k}')
    for k in range(8): a(f'v_rcp_f32 v{104+k}, v{104+k}')
    for k in range(8): a(f'v_mul_f32 v{FA+k}, v{FA+k}, v{104+k}')
    for k in range(4): cvt(a, FA + k, FA + 2 * k, FA + 2 * k + 1)
    a(f'ds_write_b128 v{FW}, {vr(FA,4)}')
    a('s_waitcnt lgkmcnt(0)'); a('s_barrier')
    lmark(a, 3)
    FF = 32
    for f in range(4): a(f'ds_read_b128 {vr(FF+4*f,4)}, v{L16} offset:{L_FX + f*1024}')
    def g_out(k):
        A_ = 64 + 8 * (k & 1); P_ = 48 + 4 * k
        return [lambda q=q: cvt(a, P_ + q, A_ + 2 * q, A_ + 2 * q + 1) for q in range(4)] + \
               [lambda: a(f'v_bfi_b32 v{P_}, 1, s{SPAR}, v{P_}'),
                lambda: a(f'buffer_store_dwordx4 {vr(P_,4)}, v{PSA}, s[{WS}:{WS+3}], s{T0} offen offset:{64*k}')]
    for k in range(4):
        A_ = 64 + 8 * (k & 1)
        pend = g_out(k - 1) if k else []
        n = 0
        for t in range(4):
            if k == 0: a(f's_waitcnt lgkmcnt({3-t})')
            for mm in range(2):
                D = vr(A_ + 4 * mm, 4); b = 128 + ((2 * k + mm) * 4 + t) * 4
                a(f'v_mfma_f32_16x16x32_bf16 {D}, a[{b}:{b+3}], {vr(FF + 4*t,4)}, {"0" if t == 0 else D}')
                n += 1
                if n >= 3 and pend: pend.pop(0)()
        while pend: pend.pop(0)()
    for f in g_out(3): f()
    a.label(Lred)
    lmark(a, 4)
    a(f's_lshl_b32 s{T0}, s{S_R}, 14'); a(f's_lshl_b32 s{T1}, s{S_W}, 8'); a(f's_add_u32 s{T0}, s{T0}, s{T1}'); a(f's_add_u32 s{SRED}, s{SRED}, s{T0}')
    RD, TG = 96, 100
    for _ in range(FD[1]): a('s_nop 15')
    reduce_rows(a, 4, 64, RD, TG, SEL, RLA, SRED, SPAR, T0, SP, fail)
    lmark(a, 5)
    def rnd4(b):
        cvt(a, b, b, b + 1); cvt(a, b + 1, b + 2, b + 3)
        unpack(a, b + 2, b + 3, b + 1); a(f'v_and_b32 v{b+1}, 0xffff0000, v{b}'); a(f'v_lshlrev_b32 v{b}, 16, v{b}')
    rnd4(RD)
    for k in range(4): a(f'v_mul_f32 v{RD+k}, v{GB+k}, v{RD+k}')
    rnd4(RD)
    for k in range(4): a(f'v_add_f32 v{RD+k}, v{XF+k}, v{RD+k}')
    cvt(a, RD, RD, RD + 1); cvt(a, RD + 1, RD + 2, RD + 3)
    a(f'buffer_store_dwordx2 {vr(RD,2)}, v{RO}, s[{TS}:{TS+3}], s{SROW} offen')
    a(f's_add_u32 s{SEG}, s{SEG}, 2')
    a(f's_cmp_lt_u32 s{SEG}, 64')
    a(f's_cbranch_scc1 {Lp}')
    a(f's_branch {done}')
    a.label(Lzero)
    a(f's_lshr_b32 s{T0}, s{S_R}, 1'); a(f's_lshl_b32 s{T0}, s{T0}, 10'); a(f's_lshl_b32 s{T1}, s{S_W}, 8'); a(f's_add_u32 s{T0}, s{T0}, s{T1}'); a(f's_add_u32 s{T0}, s{T0}, s{SRED}')
    a(f's_and_b32 s{T1}, s{S_R}, 1'); a(f's_lshl_b32 s{T1}, s{T1}, 18'); a(f's_add_u32 s{T0}, s{T0}, s{T1}')
    a(f'v_mov_b32 v48, s{SPAR}')
    for k in range(1, 4): a(f'v_mov_b32 v{48+k}, 0')
    for k in range(4): a(f'buffer_store_dwordx4 v[48:51], v{PSA}, s[{WS}:{WS+3}], s{T0} offen offset:{64*k}')
    a(f's_branch {Lred}')
```

```python
import sys
from common import *
from chain import gen_chain
from roles import gen_front, gen_qkv, gen_att, gen_ffn
HDR = open('adaLN_cond__memory_aug_recurrent_mem_tr__dense_activation_silu__prompt.s.ref').read().split('; Override launch')[0]
def build(d1=70, d2=10, d3=25, d4=0, timing=False, codepf=0, wdepth=8, cdepth=8, loopmark=False, fm=False, touch=False, gate=(False, True), ipoll=20, ieval=26, **kw):
    import roles, chain
    roles.LOOPMARK[0] = loopmark; roles.FM[0] = fm; roles.GATE[:] = gate; chain.IPE[:] = [ipoll, ieval]
    roles.Stager.DEPTH = wdepth; chain.CH_DEPTH = cdepth
    a = Asm()
    TIMING[0] = timing
    if timing:
        a('s_memtime s[78:79]'); a('s_memrealtime s[94:95]')
        for k in (76, 80, 82, 84, 86, 88, 90, 92): a(f's_mov_b32 s{k}, 0')
    prologue(a, codepf=codepf, touch=touch)
    a('s_cmp_eq_u32 s5, 0'); a('s_cbranch_scc1 L_role_chain')
    a('s_cmp_lt_u32 s5, 3'); a('s_cbranch_scc1 L_role_qkv')
    a('s_cmp_eq_u32 s5, 3'); a('s_cbranch_scc1 L_role_att')
    gen_front(a)
    a('s_cmp_lt_u32 s5, 6'); a('s_cbranch_scc1 L_role_att')
    gen_ffn(a)
    a.label('L_role_att'); gen_att(a)
    a.label('L_role_qkv'); gen_qkv(a)
    a.label('L_role_chain'); gen_chain(a, d1=d1, d2=d2, d3=d3, d4=d4, timing=timing, **kw)
    epilogue(a, timing)
    return HDR + header(NAME) + a.text() + footer(NAME), a
if __name__ == '__main__':
    txt, a = build()
    open('adaLN_cond__memory_aug_recurrent_mem_tr__dense_activation_silu__prompt.s', 'w').write(txt)
    print('lines', len(a.lines), 'bytes', len(txt))
```
